```python
import torch

def _softmax(x, axis=-1):
    return torch.softmax(x, dim=axis)
def _gelu(x):
    return torch.nn.functional.gelu(x, approximate="tanh")
def _silu(x):
    return torch.nn.functional.silu(x)
def _sigmoid(x):
    return torch.sigmoid(x)
def _layernorm(x, axis=-1, eps=1e-5):
    m = x.mean(dim=axis, keepdim=True)
    v = x.var(dim=axis, keepdim=True, unbiased=False)
    return (x - m) / torch.sqrt(v + eps)
def _scatter_add(tgt, idx, src, axis=0):
    return tgt.clone().index_add_(axis, idx, src)
def _segment_sum(src, seg, n):
    out = torch.zeros((n,) + src.shape[1:], dtype=src.dtype)
    return out.index_add_(0, seg, src)
def _pad(x, pw):
    flat = tuple(v for pair in reversed(pw) for v in pair)
    return torch.nn.functional.pad(x, flat)

kernel_name = 'concat_heads__mha_block_cached__gqa_block_cached__decode'

def setup_inputs():

    _w = (lambda a: (lambda t: t.to(torch.bfloat16) if t.is_floating_point() else t)(torch.as_tensor(a)))
    def _A_setup():
        B, Sq, D = 1, 1, 640
        H, Sk, Dh = 32, 8192, 128
        return {
            "x": _w((lambda *s: torch.randn(*s, dtype=torch.bfloat16) * 0.8)(B, Sq, D)),
            "k_cache": _w((lambda *s: torch.randn(*s, dtype=torch.bfloat16) * 1.6)(B, H, Sk, Dh)),
            "v_cache": _w((lambda *s: torch.randn(*s, dtype=torch.bfloat16) * 0.2)(B, H, Sk, Dh)),
            "wq": _w((lambda *s: torch.randn(*s, dtype=torch.bfloat16) * 1.6)(D, H * Dh) * (D ** -0.5)),
            "wo": _w((lambda *s: torch.randn(*s, dtype=torch.bfloat16) * 0.2)(H * Dh, D) * ((H * Dh) ** -0.5)),
        }
    _A_in = _A_setup()

    def _B_setup():
        B, Sq, D = 1, 1, 640
        Hq, Hkv, Sk, Dh = 32, 32, 8192, 128
        assert Hq % Hkv == 0, (Hq, Hkv)
        return {
            "x": _w((lambda *s: torch.randn(*s, dtype=torch.bfloat16) * 0.8)(B, Sq, D)),
            "k_cache": _w((lambda *s: torch.randn(*s, dtype=torch.bfloat16) * 1.6)(B, Hkv, Sk, Dh)),
            "v_cache": _w((lambda *s: torch.randn(*s, dtype=torch.bfloat16) * 0.2)(B, Hkv, Sk, Dh)),
            "wq": _w((lambda *s: torch.randn(*s, dtype=torch.bfloat16) * 1.6)(D, Hq * Dh) * (D ** -0.5)),
            "wo": _w((lambda *s: torch.randn(*s, dtype=torch.bfloat16) * 0.2)(Hq * Dh, D) * ((Hq * Dh) ** -0.5)),
        }
    _B_in = _B_setup()

    return {
        "A_x": _A_in["x"],
        "A_k_cache": _A_in["k_cache"],
        "A_v_cache": _A_in["v_cache"],
        "A_wq": _A_in["wq"],
        "A_wo": _A_in["wo"],
        "B_x": _B_in["x"],
        "B_k_cache": _B_in["k_cache"],
        "B_v_cache": _B_in["v_cache"],
        "B_wq": _B_in["wq"],
        "B_wo": _B_in["wo"],
    }

def reference(A_x, A_k_cache, A_v_cache, A_wq, A_wo, B_x, B_k_cache, B_v_cache, B_wq, B_wo):
    def _A_ref(x, k_cache, v_cache, wq, wo):
        B, Sq, D = x.shape
        H, Dh = 32, 128
        q = (lambda x, *d: x.permute(*d))((x @ wq).reshape(B, Sq, H, Dh), 0, 2, 1, 3)
        scores = torch.einsum("bhqd,bhkd->bhqk", q, k_cache) * (Dh ** -0.5)
        p = _softmax(scores, axis=-1)
        o = torch.einsum("bhqk,bhkd->bhqd", p, v_cache)
        return (lambda x, *d: x.permute(*d))(o, 0, 2, 1, 3).reshape(B, Sq, H * Dh) @ wo

    def _B_ref(x, k_cache, v_cache, wq, wo):
        B, Sq, D = x.shape
        Hq, Dh = 32, 128
        Hkv = k_cache.shape[1]
        rep = Hq // Hkv
        q = (lambda x, *d: x.permute(*d))((x @ wq).reshape(B, Sq, Hq, Dh), 0, 2, 1, 3)
        k = (lambda x, n, axis: torch.repeat_interleave(x, n, dim=axis))(k_cache, rep, axis=1)
        v = (lambda x, n, axis: torch.repeat_interleave(x, n, dim=axis))(v_cache, rep, axis=1)
        scores = torch.einsum("bhqd,bhkd->bhqk", q, k) * (Dh ** -0.5)
        p = _softmax(scores, axis=-1)
        o = torch.einsum("bhqk,bhkd->bhqd", p, v)
        return (lambda x, *d: x.permute(*d))(o, 0, 2, 1, 3).reshape(B, Sq, Hq * Dh) @ wo

    a = _A_ref(A_x, A_k_cache, A_v_cache, A_wq, A_wo)
    b = _B_ref(B_x, B_k_cache, B_v_cache, B_wq, B_wo)
    return torch.concatenate([a, b], axis=-1)
```

```python
import sys, math, struct
NAME = "concat_heads__mha_block_cached__gqa_block_cached__decode"

HDR = """; Kernarg layout for this problem (104 bytes, ptrs only, base s[0:1]):
"""

def f32hex(x):
    return "0x%08x" % struct.unpack("<I", struct.pack("<f", x))[0]

LOG2E = f32hex(1.4426950408889634)
SCALE = f32hex(128 ** -0.5)

L_QP = 0
L_ML = 2048
L_CNT = 2080
L_CW = 2096
L_OW = 2304
L_YB = 4352
YS = 2576
L_CQ = 2084
L_QB = 14848
LDS_BYTES = 16384
WS_ML = 0
B_ML = 0x60000
B_Q = 0x70000
WS_ACC = 65536
WS_AC2 = 65536 + 8 * 3072
WS_Q = 0x20000
WS_STAMP = 1 << 20
DBG_Z = 64
SPIN = 0x4000

def gen(D=32, E=6, woout=3, wflag=" nt", kvflag=" nt", stamps=False, trig=2, psleep=32,
        fine=False, sprio=0, padto=0, Epro=None, EV=None, nopub=0, latepub=0,
        seg=8, R=4, Eend=None, nend=0, sst=False, tst=False, hprio=2, skew=0, qsleep=8, qs0=24, xprio=3, nf=6, late=0, cnt=False, Eh=9, lv="N", bst=0, ns=16, smap=1, p1sleep=16, spread=0, pre=0, wob=None, wadj=0, kb=None, wosl=0, gend=8, sf='sc1', zlate=0, noqx=0, nozero=0):
    bar0 = True
    SF = sf.replace('_', ' ')
    LV = dict(A=[(14, 0x55555555), (20, 0x6db6db6d), (25, 0x77777777), (29, 0x7f7f7f7f), (31, 0xffffffff)],
              B=[(18, 0x55555555), (24, 0x6db6db6d), (28, 0x77777777), (31, 0xffffffff)],
              C=[(10, 0x55555555), (16, 0x6db6db6d), (22, 0x77777777), (27, 0x7f7f7f7f), (30, 0xffffffff)],
              D=[(20, 0x55555555), (27, 0x77777777), (30, 0xffffffff)],
              E=[(8, 0x55555555), (14, 0x6db6db6d), (20, 0x77777777), (25, 0x7f7f7f7f), (28, 0xffffffff)],
              F=[(12, 0x55555555), (18, 0x77777777), (24, 0x7f7f7f7f), (28, 0xffffffff)],
              N=[])[lv]
    if qs0 is None: qs0 = qsleep
    assert R in (1, 2, 4)
    if EV is None: EV = E
    if Epro is None: Epro = E
    if Eend is None: Eend = EV
    NSEG = -(-640 // (seg - 1))
    NP = NSEG * seg
    assert NP <= 768
    L = []
    stream = [False]
    a = L.append
    def lab(s): L.append(s + ":")
    def stamp(i, kind=None):
        if kind == "s" and not sst: return
        if kind == "t" and not tst: return
        if kind is None and (sst or tst) and i in (2, 3, 4) and not stream[0]: return
        if kind is None and sst and i in (1, 2, 3, 4) and stream[0]: return
        if stamps:
            a(f"s_memrealtime s[{70+2*i}:{71+2*i}]")
            a("s_waitcnt lgkmcnt(0)")
    def stamp_out(slot, n):
        a("s_lshl_b32 s54, s2, 3")
        a(f"s_add_u32 s54, s54, {slot}")
        a("s_lshl_b32 s54, s54, 5")
        a(f"s_add_u32 s54, s54, {WS_STAMP}")
        for i in range(8):
            a(f"v_mov_b32 v{16+i}, s{70+2*i}" if i < n else f"v_mov_b32 v{16+i}, 0")
        a("v_mov_b32 v3, s54")
        a("s_mov_b64 exec, 1")
        a("global_store_dwordx4 v3, v[16:19], s[24:25]")
        a("global_store_dwordx4 v3, v[20:23], s[24:25] offset:16")
    a(HDR.rstrip())
    a(f"; @launch grid=(256,1,1) block=(512,1,1) lds={LDS_BYTES}")
    a('.amdgcn_target "amdgcn-amd-amdhsa--gfx950"')
    a(".text")
    a(f".globl {NAME}_kernel")
    a(".p2align 8")
    a(f".type {NAME}_kernel,@function")
    a(f"{NAME}_kernel:")
    if padto: a("s_memrealtime s[86:87]")
    a("s_cmp_ge_u32 s2, 256")
    a("s_cbranch_scc1 L_end")
    if stamps: a("s_memrealtime s[70:71]")
    a("s_and_b32 s26, s2, 7")
    a("s_lshr_b32 s27, s2, 3")
    a("s_and_b32 s28, s27, 3")
    a("s_lshr_b32 s29, s27, 2")
    if skew == 1:
        a("s_add_u32 s26, s26, s29")
        a("s_and_b32 s26, s26, 7")
    if skew == 2:
        a("s_lshl_b32 s26, s26, 2")
        a("s_and_b32 s3, s29, 3")
        a("s_add_u32 s26, s26, s3")
        a("s_lshr_b32 s29, s29, 2")
        a("s_lshl_b32 s29, s29, 5")
    else:
        a("s_lshl_b32 s29, s29, 3")
    a("s_add_u32 s29, s29, s26")
    a("s_lshr_b32 s31, s29, 5")
    a("s_mul_i32 s3, s31, 40")
    a("s_load_dwordx8 s[8:15], s[0:1], s3")
    a("s_load_dwordx2 s[16:17], s[0:1], s3 offset:32")
    a("s_load_dwordx4 s[20:23], s[0:1], 80")
    a("s_load_dwordx2 s[24:25], s[0:1], 96")
    a("s_and_b32 s30, s29, 31")
    a("v_lshrrev_b32 v1, 6, v0")
    a("v_and_b32 v2, 63, v0")
    a("v_readfirstlane_b32 s32, v1")
    a("v_and_b32 v3, 15, v0")
    a("v_bfe_u32 v4, v0, 4, 2")
    a("v_and_b32 v5, 1, v0")
    a("v_lshlrev_b32 v5, 4, v5")
    a("v_mov_b32 v6, 0xffff")
    a("v_lshlrev_b32 v6, v5, v6")
    a("v_lshrrev_b32 v7, 1, v3")
    for d in range(4):
        a(f"v_cmp_eq_u32 vcc, {d}, v7")
        a("s_nop 1")
        a(f"v_cndmask_b32 v{56+d}, 0, v6, vcc")
    a("s_cmp_ge_u32 s32, 4")
    a("s_cbranch_scc1 L_stream")

    XP = 16
    SEL = 36
    AS = 44
    ACC = 60
    T = 80
    W = 96
    if hprio: a(f"s_setprio {hprio}")
    a("v_mul_u32_u24 v8, 80, v4")
    a("s_mul_i32 s52, s32, 320")
    a("s_mul_i32 s55, s28, 20")
    a("s_add_u32 s52, s52, s55")
    a("v_min_u32 v5, 4, v3")
    a("v_lshl_add_u32 v5, v5, 2, v8")
    a("v_mul_u32_u24 v9, 0x50000, v4")
    a("v_lshl_add_u32 v9, v3, 4, v9")
    a("s_mul_i32 s53, s32, 0x140000")
    a("s_lshl_b32 s54, s30, 8")
    a("s_add_u32 s53, s53, s54")
    a("s_mul_i32 s55, s28, 0x14000")
    a("s_add_u32 s56, s55, s53")
    for i in range(4): a(f"v_mov_b32 v{T+i}, 0")
    a(f"v_mov_b32 v14, {L_CNT}")
    a(f"ds_write_b128 v14, v[{T}:{T+3}]")
    a("v_lshlrev_b32 v15, 4, v2")
    QA = 36
    SN = W + 40
    XT = W + 56
    if spread == 1:
        a("s_and_b32 s34, s2, 3")
        a("s_lshl_b32 s34, s34, 19")
        a("s_lshr_b32 s54, s2, 5")
        a("s_lshl_b32 s54, s54, 21")
        a("s_or_b32 s34, s34, s54")
        a("s_and_b32 s54, s2, 4")
        a("s_lshl_b32 s54, s54, 23")
        a("s_or_b32 s34, s34, s54")
    elif spread == 2:
        a("s_and_b32 s34, s2, 3")
        a("s_lshl_b32 s34, s34, 19")
        a("s_and_b32 s54, s2, 4")
        a("s_lshl_b32 s54, s54, 23")
        a("s_or_b32 s34, s34, s54")
    else:
        a("s_mov_b32 s34, 0")
    if spread == 1:
        a("s_lshl_b32 s54, s30, 11")
        a(f"s_add_u32 s54, s54, {B_Q}")
    elif spread == 2:
        a("s_lshr_b32 s54, s2, 5")
        a("s_lshl_b32 s54, s54, 11")
        a("s_and_b32 s55, s2, 3")
        a("s_lshl_b32 s55, s55, 14")
        a("s_add_u32 s54, s54, s55")
        a(f"s_add_u32 s54, s54, {B_Q}")
    else:
        a("s_lshl_b32 s54, s29, 11")
        a(f"s_add_u32 s54, s54, {WS_Q}")
    a("s_add_u32 s54, s54, s34")
    a("s_lshl_b32 s55, s28, 9")
    a("s_add_u32 s54, s54, s55")
    a("s_lshl_b32 s55, s2, 7")
    a("s_add_u32 s34, s34, s55")
    a(f"s_add_u32 s34, s34, {B_ML}")
    a(f"v_add_u32 v{QA}, s54, v15")
    for i in range(1, 4):
        a(f"v_xor_b32 v{QA+i}, {512*i}, v{QA}")
    a("s_cmp_lg_u32 s32, 0")
    a("s_waitcnt lgkmcnt(0)")
    stamp(2, "s")
    a("s_cbranch_scc1 L_h_nosnap")
    if late:
        a(f"s_cmp_lg_u32 s28, 2")
        a("s_cbranch_scc1 L_h_nolate")
        for i in range(late): a("s_sleep 127")
        lab("L_h_nolate")
    a("s_mov_b32 exec_hi, 0")
    for i in range(4):
        a(f"global_load_dwordx4 v[{SN+4*i}:{SN+4*i+3}], v{QA+i}, s[24:25] sc1")
    a("s_mov_b64 exec, -1")
    lab("L_h_nosnap")
    a("s_mov_b32 s36, s8")
    a("s_mov_b32 s37, s9")
    a("s_mov_b32 s38, 1280")
    a("s_mov_b32 s39, 0x20000")
    a("s_mov_b32 s40, s14")
    a("s_mov_b32 s41, s15")
    a("s_mov_b32 s42, 5242880")
    a("s_mov_b32 s43, 0x20000")
    a(f"buffer_load_dword v{XP}, v5, s[36:39], s52 offen")
    for t in range(10):
        a(f"buffer_load_dwordx4 v[{W+4*t}:{W+4*t+3}], v9, s[40:43], s56 offen{wflag}")
        if t < 9: a("s_add_u32 s56, s56, 0x2000")
    a("s_barrier")
    a("s_mov_b32 s57, 0x01000100")
    a("s_mov_b32 s58, 0x03020302")
    a("s_mov_b32 s44, s16")
    a("s_mov_b32 s45, s17")
    a("s_mov_b32 s46, 5242880")
    a("s_mov_b32 s47, 0x20000")
    a("v_lshlrev_b32 v13, 5, v3")
    a("v_lshl_add_u32 v13, v4, 4, v13")
    a("s_lshl_b32 s54, s32, 9")
    a("v_add_u32 v14, s54, v13")
    a(f"v_mov_b32 v10, {L_CQ}")
    a("v_mov_b32 v11, 1")
    a("s_waitcnt vmcnt(10)")
    a(f"v_perm_b32 v{XP+2}, v{XP}, v{XP}, s57")
    a(f"v_perm_b32 v{XP+3}, v{XP}, v{XP}, s58")
    a("s_nop 1")
    def mkA(t):
        s = AS + 4 * (t & 1)
        for d in range(4):
            a(f"v_and_b32_dpp v{s+d}, v{XP + 2 + (t & 1)}, v{56+d} row_newbcast:{t >> 1} row_mask:0xf bank_mask:0xf")
    mkA(0)
    for t in range(10):
        if t + 1 < 10: mkA(t + 1)
        else: a("s_nop 1")
        a(f"s_waitcnt vmcnt({9 - t})")
        s = AS + 4 * (t & 1)
        c = "0" if t == 0 else f"v[{ACC}:{ACC+3}]"
        a(f"v_mfma_f32_16x16x32_bf16 v[{ACC}:{ACC+3}], v[{s}:{s+3}], v[{W+4*t}:{W+4*t+3}], {c}")
    a("s_cmp_lg_u32 s32, 0")
    a("s_cbranch_scc1 L_h_nopz")
    a(f"s_setprio {xprio}")
    lab("L_h_nopz")
    a("s_mov_b32 exec_lo, -1")
    a("s_mov_b32 exec_hi, 0")
    a("s_nop 4")
    a(f"ds_write_b128 v14, v[{ACC}:{ACC+3}] offset:{L_QP}")
    a("s_mov_b64 exec, 1")
    a("ds_add_u32 v10, v11")
    a("s_mov_b64 exec, -1")
    a("s_cbranch_scc0 L_h_w0")
    def zero_duty(out):
        a("s_cmp_lg_u32 s32, 1")
        a(f"s_cbranch_scc1 {out}")
        a("s_cmp_ge_u32 s2, 8")
        a(f"s_cbranch_scc1 {out}")
        a("v_lshlrev_b32 v15, 4, v2")
        a("s_mul_i32 s54, s2, 3072")
        a(f"s_add_u32 s54, s54, {WS_ACC}")
        a("s_lshl_b32 s55, s2, 10")
        a(f"s_add_u32 s55, s55, {WS_AC2}")
        a("v_add_u32 v13, s55, v15")
        a("v_add_u32 v15, s54, v15")
        a("v_lshlrev_b32 v14, 10, v2")
        a("v_add_u32 v14, s34, v14")
        if spread == 1:
            a("v_lshrrev_b32 v12, 2, v2")
            a("v_lshl_add_u32 v14, v12, 21, v14")
        if not nozero:
            for c in range(3):
                a(f"global_store_dwordx4 v15, v[{T}:{T+3}], s[24:25] offset:{1024*c} {SF}")
            a(f"global_store_dwordx4 v13, v[{T}:{T+3}], s[24:25] {SF}")
            a("s_mov_b32 exec_hi, 0")
            a(f"global_store_dwordx2 v14, v[{T}:{T+1}], s[24:25] offset:{WS_ML} {SF}")
        a("s_mov_b64 exec, 1")
        a(f"v_mov_b32 v{T+5}, {DBG_Z}")
        a("s_waitcnt vmcnt(0)")
        a(f"global_atomic_add v{T+5}, v11, s[22:23]")
        a("s_mov_b64 exec, -1")
    if not zlate: zero_duty("L_h_bar1")
    a("s_branch L_h_bar1")
    lab("L_h_w0")
    stamp(3, "s")
    a("s_mov_b32 s61, 0")
    lab("L_h_pollq")
    a(f"ds_read_b32 v{T}, v10")
    a("s_waitcnt lgkmcnt(0)")
    a(f"v_readfirstlane_b32 s54, v{T}")
    a("s_add_u32 s61, s61, 1")
    a("s_nop 2")
    a("s_cmp_ge_u32 s54, 4")
    a("s_cbranch_scc1 L_h_pollqx")
    a("s_sleep 1")
    a(f"s_cmp_lt_u32 s61, {SPIN * 16}")
    a("s_cbranch_scc1 L_h_pollq")
    lab("L_h_pollqx")
    a("s_mov_b32 exec_hi, 0")
    for u in range(4):
        a(f"ds_read_b128 v[{XP+4*u}:{XP+4*u+3}], v15 offset:{L_QP + 512*u}")
    for i in range(4):
        a(f"v_not_b32 v{SN+i}, v{SN+i}")
    a("s_mov_b32 s58, 0")
    a("s_mov_b32 s59, 0")
    a("s_mov_b32 s60, 0")
    a("s_waitcnt lgkmcnt(0)")
    for i in range(4):
        a(f"v_add_f32 v{XP+i}, v{XP+i}, v{XP+4+i}")
        a(f"v_add_f32 v{XP+8+i}, v{XP+8+i}, v{XP+12+i}")
    for i in range(4):
        a(f"v_add_f32 v{XP+i}, v{XP+i}, v{XP+8+i}")
    for i in range(4):
        a(f"v_bfi_b32 v{T+i}, 1, v{SN+i}, v{XP+i}")
    if not noqx: a(f"global_store_dwordx4 v{QA}, v[{T}:{T+3}], s[24:25] {SF}")
    else:
        for i in range(1, 4): a(f"s_mov_b32 s{57+i}, 1")
    stamp(4, "s")
    a("s_mov_b32 s61, 0")
    a(f"v_mov_b32 v12, {DBG_Z}")
    a("v_lshlrev_b32 v13, 10, v2")
    a("v_xor_b32 v13, s34, v13")
    if qs0: a(f"s_sleep {qs0}")
    lab("L_h_pollx")
    for i in range(1, 4):
        a(f"global_load_dwordx4 v[{XP+4*i}:{XP+4*i+3}], v{QA+i}, s[24:25] sc1")
    a("s_add_u32 s61, s61, 1")
    for i in range(1, 4):
        a(f"s_waitcnt vmcnt({3-i})")
        for k in range(4):
            a(f"v_xor_b32 v{XT+4*(i-1)+k}, v{XP+4*i+k}, v{SN+4*i+k}")
        b = XT + 4 * (i - 1)
        a(f"v_and_b32 v{b}, v{b}, v{b+1}")
        a(f"v_and_b32 v{b+2}, v{b+2}, v{b+3}")
        a(f"v_and_or_b32 v{b}, v{b}, v{b+2}, s{57+i}")
    a(f"v_and_b32 v{XT}, v{XT}, v{XT+4}")
    a(f"v_and_b32 v{XT+8}, 1, v{XT+8}")
    a(f"v_and_b32 v{XT}, v{XT}, v{XT+8}")
    a(f"v_cmp_eq_u32 vcc, 0, v{XT}")
    a("s_cbranch_vccz L_h_gotq")
    a(f"s_sleep {qsleep}")
    a(f"s_cmp_lt_u32 s61, {nf}")
    a("s_cbranch_scc1 L_h_pollx")
    a("s_mov_b64 exec, 1")
    a(f"global_load_dword v{XT}, v12, s[22:23] sc1")
    a("s_waitcnt vmcnt(0)")
    a(f"v_readfirstlane_b32 s54, v{XT}")
    a("s_mov_b32 exec_lo, 15")
    a("s_nop 2")
    a("s_cmp_lt_u32 s54, 8")
    a("s_cbranch_scc1 L_h_nofl")
    a(f"global_load_dword v{XT}, v13, s[24:25] offset:{WS_ML + 4} sc1")
    a("s_waitcnt vmcnt(0)")
    a(f"v_cmp_ne_u32 vcc, 0, v{XT}")
    a("s_nop 3")
    for i in range(1, 4):
        a(f"s_bfe_u32 s{57+i}, vcc_lo, {(1 << 16) | i}")
    lab("L_h_nofl")
    a("s_mov_b32 exec_lo, -1")
    a(f"s_sleep {psleep}")
    a(f"s_cmp_lt_u32 s61, {SPIN}")
    a("s_cbranch_scc1 L_h_pollx")
    lab("L_h_gotq")
    if cnt:
        a("s_mul_i32 s74, s61, 100")
        a("s_add_u32 s74, s74, s70")
    for i in range(16):
        a(f"v_and_b32 v{XP+i}, -2, v{XP+i}")
    for i in range(4):
        a(f"v_add_f32 v{XP+i}, v{XP+i}, v{XP+4+i}")
        a(f"v_add_f32 v{XP+8+i}, v{XP+8+i}, v{XP+12+i}")
    for i in range(4):
        a(f"v_add_f32 v{XP+i}, v{XP+i}, v{XP+8+i}")
    a("v_lshlrev_b32 v14, 3, v2")
    a(f"v_cvt_pk_bf16_f32 v{T}, v{XP}, v{XP+1}")
    a(f"v_cvt_pk_bf16_f32 v{T+1}, v{XP+2}, v{XP+3}")
    a(f"ds_write_b64 v14, v[{T}:{T+1}] offset:{L_QB}")
    a("s_mov_b64 exec, -1")
    lab("L_h_bar1")
    a("s_waitcnt lgkmcnt(0)")
    stamp(1)
    a("s_barrier")
    a("s_setprio 0")
    a(f"v_mul_u32_u24 v9, {1280 if wadj else 10240}, v4")
    a("v_lshl_add_u32 v9, v3, 4, v9")
    a("s_lshl_b32 s53, s30, 7")
    a("s_lshl_b32 s54, s32, 5")
    a("s_add_u32 s53, s53, s54")
    a("s_mul_i32 s53, s53, 1280")
    def woloads(rqs):
        for rq in rqs:
            for sg in range(5):
                r = W + 4 * (rq * 5 + sg)
                if wob is not None:
                    if sg == 0:
                        a(f"s_waitcnt vmcnt({wob})")
                        if wosl: a(f"s_sleep {wosl}")
                elif woout: a(f"s_waitcnt vmcnt({woout-1})")
                a(f"buffer_load_dwordx4 v[{r}:{r+3}], v9, s[44:47], s53 offen offset:{sg*256}{wflag}")
            if rq < 7: a(f"s_add_u32 s53, s53, {5120 if wadj else 1280}")
    def zpoll(tag):
        a("s_mov_b64 exec, 1")
        a(f"v_mov_b32 v12, {DBG_Z}")
        a("s_mov_b32 s61, 0")
        lab(f"L_{tag}_pollz")
        a(f"global_load_dword v{T+15}, v12, s[22:23] sc1")
        a("s_waitcnt vmcnt(0)")
        a(f"v_readfirstlane_b32 s60, v{T+15}")
        a("s_add_u32 s61, s61, 1")
        a("s_nop 2")
        a("s_cmp_ge_u32 s60, 8")
        a(f"s_cbranch_scc1 L_{tag}_zok")
        a(f"s_sleep {psleep}")
        a(f"s_cmp_lt_u32 s61, {SPIN}")
        a(f"s_cbranch_scc1 L_{tag}_pollz")
        lab(f"L_{tag}_zok")
    if zlate:
        woloads(range(zlate))
        zero_duty("L_h_zl")
        lab("L_h_zl")
        woloads(range(zlate, 8))
    else: woloads(range(8))
    a("s_cmp_lg_u32 s32, 0")
    a("s_cbranch_scc1 L_h_bar2")
    if smap == 0:
        a("v_mov_b32 v5, v2")
    else:
        a("v_and_b32 v5, 7, v2")
        a("v_and_b32 v6, 24, v2")
        a("v_lshl_or_b32 v5, v6, 3, v5")
        a("v_and_b32 v6, 6, v2")
        a("v_lshl_or_b32 v5, v6, 2, v5")
        a("v_and_b32 v6, 1, v2")
        a("v_lshl_or_b32 v5, v6, 5, v5")
    a("v_lshlrev_b32 v6, 7, v5")
    if spread:
        a("v_and_b32 v7, 3, v5")
        a("v_lshl_or_b32 v6, v7, 19, v6")
        a("v_and_b32 v7, 4, v5")
        a("v_lshl_or_b32 v6, v7, 23, v6")
    if spread == 1:
        a("v_lshrrev_b32 v7, 5, v5")
        a("v_lshl_or_b32 v6, v7, 21, v6")
    a("v_xor_b32 v5, s34, v6")
    zpoll("h")
    a(f"v_mov_b32 v14, {L_CNT}")
    a("s_mov_b32 s61, 0")
    lab("L_h_poll1")
    a(f"ds_read_b32 v{T}, v14")
    a("s_waitcnt lgkmcnt(0)")
    a(f"v_readfirstlane_b32 s54, v{T}")
    a("s_add_u32 s61, s61, 1")
    a("s_nop 2")
    a("s_and_b32 s54, s54, 0xff")
    a("s_cmp_ge_u32 s54, 4")
    a("s_cbranch_scc1 L_h_poll1x")
    a(f"s_sleep {p1sleep}")
    a(f"s_cmp_lt_u32 s61, {SPIN}")
    a("s_cbranch_scc1 L_h_poll1")
    lab("L_h_poll1x")
    stamp(2)
    if LV:
        a("s_mov_b32 exec_lo, 0x%x" % (((1 << ns) - 1) & ~1))
        a(f"global_load_dword v6, v5, s[24:25] offset:{WS_ML + 4} sc1")
        a("s_mov_b64 exec, 1")
    a(f"v_mov_b32 v14, {L_ML}")
    a(f"ds_read_b128 v[{T}:{T+3}], v14")
    a(f"ds_read_b128 v[{T+4}:{T+7}], v14 offset:16")
    a(f"s_mov_b32 s55, {LOG2E}")
    a("s_waitcnt lgkmcnt(0)")
    a(f"v_max3_f32 v{T+8}, v{T}, v{T+2}, v{T+4}")
    a(f"v_max_f32 v{T+8}, v{T+8}, v{T+6}")
    for w in range(4):
        a(f"v_sub_f32 v{T+10+w}, v{T+2*w}, v{T+8}")
    for w in range(4):
        a(f"v_mul_f32 v{T+10+w}, s55, v{T+10+w}")
    for w in range(4):
        a(f"v_exp_f32 v{T+10+w}, v{T+10+w}")
    a("s_nop 0")
    a(f"v_mul_f32 v{T+9}, v{T+10}, v{T+1}")
    for w in range(1, 4):
        a(f"v_fmac_f32 v{T+9}, v{T+10+w}, v{T+2*w+1}")
    a("s_andn2_b32 s54, s34, 0xc00")
    a(f"v_mov_b32 v13, s34")
    a(f"v_mov_b32 v15, s54")
    def publish():
        if nopub & 1: return
        a(f"global_store_dwordx2 v13, v[{T+8}:{T+9}], s[24:25] offset:{WS_ML} {SF}")
    if not latepub: publish()
    stamp(3)
    if LV:
        a("s_mov_b32 exec_lo, 0x%x" % (((1 << ns) - 1) & ~1))
        a("s_mov_b32 s57, 0")
        a("s_waitcnt vmcnt(1)")
        a("v_cmp_ne_u32 vcc, 0, v6")
        a("s_mov_b64 exec, 1")
        a(f"v_mov_b32 v14, {L_CNT}")
        a("s_nop 1")
        a("s_bcnt1_i32_b32 s54, vcc_lo")
        if bst:
            a("s_mul_i32 s76, s54, 100")
            a("s_add_u32 s76, s76, s70")
        for t, m in LV:
            a(f"s_cmp_ge_u32 s54, {(t + 1) * ns // 32 - 1}")
            a(f"s_cselect_b32 s57, 0x{m:x}, s57")
        a("v_mov_b32 v6, s57")
        a("ds_write_b32 v14, v6 offset:8")
    a(f"v_mov_b32 v14, {L_CNT}")
    a("s_mov_b32 s61, 0")
    lab("L_h_poll1b")
    a(f"ds_read_b32 v{T+14}, v14")
    a("s_waitcnt lgkmcnt(0)")
    a(f"v_readfirstlane_b32 s54, v{T+14}")
    a("s_add_u32 s61, s61, 1")
    a("s_nop 2")
    a("s_cmp_ge_u32 s54, 0x100")
    a("s_cbranch_scc1 L_h_poll1bx")
    a("s_sleep 16")
    a(f"s_cmp_lt_u32 s61, {SPIN}")
    a("s_cbranch_scc1 L_h_poll1b")
    lab("L_h_poll1bx")
    if latepub: publish()
    a("s_mov_b32 s61, 0")
    lab("L_h_poll2")
    if nopub & 2: a("s_branch L_h_got")
    for s in range(4):
        a(f"global_load_dwordx2 v[{XP+2*s}:{XP+2*s+1}], v15, s[24:25] offset:{WS_ML + 1024*s} sc1")
    a("s_waitcnt vmcnt(0)")
    a(f"v_min_u32 v{XP+8}, v{XP+1}, v{XP+3}")
    a(f"v_min3_u32 v{XP+8}, v{XP+8}, v{XP+5}, v{XP+7}")
    a("s_add_u32 s61, s61, 1")
    a(f"v_readfirstlane_b32 s59, v{XP+8}")
    a("s_nop 3")
    a("s_cmp_lg_u32 s59, 0")
    a("s_cbranch_scc1 L_h_got")
    a(f"s_sleep {psleep}")
    a(f"s_cmp_lt_u32 s61, {SPIN}")
    a("s_cbranch_scc1 L_h_poll2")
    lab("L_h_got")
    stamp(4)
    a(f"v_max3_f32 v{XP+8}, v{XP}, v{XP+2}, v{XP+4}")
    a(f"v_max_f32 v{XP+8}, v{XP+8}, v{XP+6}")
    for s in range(4):
        a(f"v_sub_f32 v{XP+10+s}, v{XP+2*s}, v{XP+8}")
    for s in range(4):
        a(f"v_mul_f32 v{XP+10+s}, s55, v{XP+10+s}")
    for s in range(4):
        a(f"v_exp_f32 v{XP+10+s}, v{XP+10+s}")
    a("s_nop 0")
    a(f"v_mul_f32 v{XP+9}, v{XP+10}, v{XP+1}")
    for s in range(1, 4):
        a(f"v_fmac_f32 v{XP+9}, v{XP+10+s}, v{XP+2*s+1}")
    a(f"v_rcp_f32 v{XP+9}, v{XP+9}")
    for w in range(4):
        a(f"v_sub_f32 v{XP+12+w}, v{T+2*w}, v{XP+8}")
    for w in range(4):
        a(f"v_mul_f32 v{XP+12+w}, s55, v{XP+12+w}")
    for w in range(4):
        a(f"v_exp_f32 v{XP+12+w}, v{XP+12+w}")
    a("s_nop 0")
    for w in range(4):
        a(f"v_mul_f32 v{XP+12+w}, v{XP+12+w}, v{XP+9}")
    a(f"v_mov_b32 v14, {L_CW}")
    a(f"ds_write_b128 v14, v[{XP+12}:{XP+15}]")
    a("s_mov_b64 exec, -1")
    a("s_waitcnt lgkmcnt(0)")
    lab("L_h_bar2")
    CL = 8
    CO = 92
    a(f"s_mov_b32 s57, {NP}")
    a(f"v_mov_b32 v14, {L_CW}")
    a("s_lshl_b32 s54, s32, 7")
    a("v_lshlrev_b32 v15, 5, v4")
    a("v_add_u32 v15, s54, v15")
    a("v_lshlrev_b32 v13, 5, v3")
    a("v_lshl_add_u32 v13, v4, 4, v13")
    a(f"s_mul_i32 s54, s32, {YS}")
    a("v_add_u32 v13, s54, v13")
    a(f"s_add_u32 s54, s54, {L_YB + 2560}")
    a("v_mov_b32 v5, s54")
    a("v_mov_b32 v6, 0x3e800000")
    a("ds_write_b32 v5, v6")
    sh = {8: 3, 16: 4}[seg]
    a(f"v_and_b32 v5, {seg-1}, v0")
    a(f"v_lshrrev_b32 v6, {sh}, v0")
    a(f"v_mul_u32_u24 v6, {seg-1}, v6")
    a("v_add_u32 v6, v6, v5")
    a(f"v_cmp_eq_u32 s[58:59], {seg-1}, v5")
    a("v_mov_b32 v7, 640")
    cstep = (256 // seg) * (seg - 1)
    for c in range(3):
        if c: a(f"v_add_u32 v6, {cstep}, v6")
        a(f"v_cmp_gt_u32 vcc, v7, v6")
        a(f"s_andn2_b64 s[{86+2*c}:{87+2*c}], vcc, s[58:59]")
        a(f"v_cndmask_b32_e64 v{CL+c}, v7, v6, s[{86+2*c}:{87+2*c}]")
        a(f"v_add_u32 v5, {256*c}, v0")
        a("v_cmp_gt_u32 vcc, s57, v5")
        a(f"s_and_b64 vcc, vcc, s[58:59]")
        a(f"s_or_b64 s[{92+2*c}:{93+2*c}], vcc, s[{86+2*c}:{87+2*c}]")
        a(f"v_lshlrev_b32 v{CO+c}, 1, v{CL+c}")
        a(f"v_lshlrev_b32 v{CL+c}, 2, v{CL+c}")
    a("v_lshlrev_b32 v12, 2, v0")
    a(f"s_and_b32 s54, s27, {R-1}")
    a(f"s_lshl_b32 s55, s31, 2")
    a("s_add_u32 s54, s54, s55")
    a("s_mul_i32 s54, s54, 3072")
    a(f"s_add_u32 s54, s54, {WS_ACC}")
    a("v_add_u32 v11, s54, v12")
    a("s_lshl_b32 s54, s31, 12")
    a(f"s_add_u32 s54, s54, {WS_AC2}")
    a("v_add_u32 v12, s54, v12")
    a("s_mov_b32 s48, s20")
    a("s_mov_b32 s49, s21")
    a("s_mov_b32 s50, 2560")
    a("s_mov_b32 s51, 0x20000")
    a("s_mul_i32 s56, s31, 1280")
    a(f"s_mov_b32 s54, {f32hex(128 // R)}")
    a(f"s_mov_b32 s55, {f32hex(128)}")
    a("s_waitcnt vmcnt(0)")
    a("s_barrier")
    stamp(5)
    a(f"ds_read_b128 v[{T}:{T+3}], v14")
    OV = 16
    for w in range(4):
        a(f"ds_read_b128 v[{OV+8*w}:{OV+8*w+3}], v15 offset:{L_OW + 512*w}")
        a(f"ds_read_b128 v[{OV+8*w+4}:{OV+8*w+7}], v15 offset:{L_OW + 512*w + 16}")
    a("s_waitcnt lgkmcnt(6)")
    for e in range(8):
        a(f"v_mul_f32 v{T+4+e}, v{T}, v{OV+e}")
    for w in range(1, 4):
        a(f"s_waitcnt lgkmcnt({6-2*w})")
        for e in range(8):
            a(f"v_fmac_f32 v{T+4+e}, v{T+w}, v{OV+8*w+e}")
    for e in range(8):
        a(f"v_cvt_pk_bf16_f32 v{T+4+e}, v{T+4+e}, v{T+4+e}")
    stamp(2, "t")
    AS2 = 48
    def mkA2(rq):
        s = AS2 + 4 * (rq & 1)
        for d in range(4):
            a(f"v_and_b32 v{s+d}, v{T+4+rq}, v{56+d}")
    mkA2(0)
    for rq in range(8):
        if rq + 1 < 8: mkA2(rq + 1)
        s = AS2 + 4 * (rq & 1)
        for sg in range(5):
            r = W + 4 * (rq * 5 + sg)
            c = "0" if rq == 0 else f"v[{ACC+4*sg}:{ACC+4*sg+3}]"
            a(f"v_mfma_f32_16x16x32_bf16 v[{ACC+4*sg}:{ACC+4*sg+3}], v[{s}:{s+3}], v[{r}:{r+3}], {c}")
    a("s_mov_b32 exec_hi, 0")
    a("s_nop 2")
    for sg in range(5):
        if sg == 4: a("s_nop 3")
        a(f"ds_write_b128 v13, v[{ACC+4*sg}:{ACC+4*sg+3}] offset:{L_YB + 512*sg}")
    a("s_mov_b64 exec, -1")
    a("s_waitcnt lgkmcnt(0)")
    stamp(3, "t")
    a("s_barrier")
    for c in range(3):
        for u in range(4):
            a(f"ds_read_b32 v{T+4*c+u}, v{CL+c} offset:{L_YB + YS*u}")
    Y = 16; O1 = 20; TB = 24; O2 = 28
    def bcast(dst, src):
        if seg == 16:
            a(f"v_mov_b32_dpp v{dst}, v{src} row_newbcast:15 row_mask:0xf bank_mask:0xf")
        else:
            a(f"v_mov_b32_dpp v{dst}, v{src} row_newbcast:7 row_mask:0xf bank_mask:0x3")
            a(f"v_mov_b32_dpp v{dst}, v{src} row_newbcast:15 row_mask:0xf bank_mask:0xc")
    for c in range(3):
        b = T + 4 * c
        a(f"s_waitcnt lgkmcnt({8-4*c})")
        a(f"v_add_f32 v{b}, v{b}, v{b+1}")
        a(f"v_add_f32 v{b+2}, v{b+2}, v{b+3}")
        a(f"v_add_f32 v{Y+c}, v{b}, v{b+2}")
        if c == 2: a(f"s_mov_b64 exec, s[{92+2*c}:{93+2*c}]")
        a(f"global_atomic_add_f32 v{O1+c}, v{11 if R > 1 else 12}, v{Y+c}, s[24:25] offset:{1024*c} sc0")
    a("s_mov_b64 exec, -1")
    stamp(4, "t")
    endl = "L_h_stamp" if stamps else "L_end"
    if R > 1:
        a("s_waitcnt vmcnt(0)")
        stamp(6)
        for c in range(3): a(f"v_add_f32 v{Y+c}, v{O1+c}, v{Y+c}")
        a("s_nop 0")
        for c in range(3): bcast(TB + c, Y + c)
        for c in range(3):
            a(f"v_cmp_eq_f32 vcc, s54, v{TB+c}")
            a(f"s_and_b64 s[{92+2*c}:{93+2*c}], vcc, s[{92+2*c}:{93+2*c}]")
        a("s_or_b64 vcc, s[92:93], s[94:95]")
        a("s_or_b64 vcc, vcc, s[96:97]")
        a(f"s_cbranch_scc0 {endl}")
        for c in range(3):
            a(f"s_mov_b64 exec, s[{92+2*c}:{93+2*c}]")
            a(f"global_atomic_add_f32 v{O1+c}, v12, v{Y+c}, s[24:25] offset:{1024*c} sc0")
        a("s_mov_b64 exec, -1")
    a("s_waitcnt vmcnt(0)")
    if R == 1: stamp(6)
    for c in range(3): a(f"v_add_f32 v{Y+c}, v{O1+c}, v{Y+c}")
    a("s_nop 0")
    for c in range(3): bcast(TB + c, Y + c)
    for c in range(3): a(f"v_cvt_pk_bf16_f32 v{Y+c}, v{Y+c}, v{Y+c}")
    for c in range(3):
        a(f"v_cmp_eq_f32 vcc, s55, v{TB+c}")
        a(f"s_and_b64 vcc, vcc, s[{92+2*c}:{93+2*c}]")
        a(f"s_and_b64 s[{86+2*c}:{87+2*c}], vcc, s[{86+2*c}:{87+2*c}]")
    for c in range(3):
        a(f"s_mov_b64 exec, s[{86+2*c}:{87+2*c}]")
        a(f"buffer_store_short v{Y+c}, v{CO+c}, s[48:51], s56 offen")
    if stamps:
        a("s_mov_b64 exec, -1")
        a("s_waitcnt vmcnt(0)")
        lab("L_h_stamp")
        stamp(7)
        stamp_out("s32", 8)
    a("s_endpgm")

    P = 16
    S = 32
    A0 = 40
    OA = 48
    Q = 52
    M = 56
    T2 = 60
    RING = 64
    NG = D // 4
    lab("L_stream")
    stream[0] = True
    if sprio: a(f"s_setprio {sprio}")
    a("s_sub_u32 s33, s32, 4")
    a("s_lshl_b32 s52, s30, 21")
    a("s_lshl_b32 s53, s28, 19")
    a("s_add_u32 s52, s52, s53")
    a("s_lshl_b32 s53, s33, 12")
    a("v_lshlrev_b32 v8, 4, v2")
    a("s_add_u32 s52, s52, s53")
    a("s_mov_b32 s53, 0")
    a("s_mov_b32 s62, 0xcccccccc")
    a("s_mov_b32 s63, 0xcccccccc")
    a("s_mov_b32 s64, 0xaaaaaaaa")
    a("s_mov_b32 s65, 0xaaaaaaaa")
    a(f"s_mov_b32 s66, {SCALE}")
    a(f"s_mov_b32 s67, {LOG2E}")
    a("s_waitcnt lgkmcnt(0)")
    stamp(1, "s")
    a("s_mov_b32 s36, s10")
    a("s_mov_b32 s37, s11")
    a("s_mov_b32 s38, 0x4000000")
    a("s_mov_b32 s39, 0x20000")
    def fine_put():
        if fine:
            a("s_waitcnt lgkmcnt(0)")
            a("v_writelane_b32 v12, s90, m0")
            a("s_add_u32 m0, m0, 1")
    if fine: a("s_mov_b32 m0, 0")
    nlab = [0]
    def refill(gslot, E, boost=False):
        if boost:
            a("s_waitcnt lgkmcnt(0)")
            a("v_readfirstlane_b32 s58, v11")
        a("s_add_u32 s54, s52, s53")
        if boost: a("s_nop 1")
        for i in range(4):
            r = RING + 16 * gslot + 4 * i
            if boost:
                nlab[0] += 1
                a(f"s_waitcnt vmcnt({Eh-1})")
                a(f"s_bitcmp1_b32 s58, {4*gslot+i}")
                a(f"s_cbranch_scc1 L_bo{nlab[0]}")
                a(f"s_waitcnt vmcnt({E-1})")
                lab(f"L_bo{nlab[0]}")
            elif kb is not None:
                if i % kb[1] == 0: a(f"s_waitcnt vmcnt({kb[0]})")
            elif E and E < D: a(f"s_waitcnt vmcnt({E-1})")
            a(f"buffer_load_dwordx4 v[{r}:{r+3}], v8, s[36:39], s54 offen offset:{1024*i}{kvflag}")
        a("s_add_u32 s53, s53, 0x4000")
        a("s_and_b32 s53, s53, 0x7ffff")
    for g in range(NG):
        if g == pre:
            if bar0: a("s_barrier")
            stamp(2, "s")
        refill(g, Epro)
        if g == 1: stamp(3, "s")
    stamp(4, "s")
    a("v_lshlrev_b32 v13, 4, v3")
    if sprio: a("s_setprio 0")
    stamp(1)
    a("s_barrier")
    stamp(2)
    a(f"ds_read_b128 v[{Q}:{Q+3}], v13 offset:{L_QB}")
    a("s_waitcnt lgkmcnt(0)")
    nit = 32 // NG
    tiles = NG // 4
    a(f"s_mov_b32 s55, 0")
    lab("L_kloop")
    a(f"s_cmp_eq_u32 s55, {nit-1}")
    a("s_cselect_b32 s36, s12, s36")
    a("s_cselect_b32 s37, s13, s37")
    for tl in range(tiles):
        for gq in range(4):
            gs = tl * 4 + gq
            a(f"s_waitcnt vmcnt({D-4})")
            if fine: a("s_memrealtime s[90:91]")
            for d in range(4):
                for i in range(4):
                    r = RING + 16 * gs + 4 * i + d
                    p = P + gq * 4 + i
                    a(f"v_dot2_f32_bf16 v{p}, v{r}, v{Q+d}, {'0' if d == 0 else 'v%d' % p}")
            refill(gs, E)
            fine_put()
        for t in range(8):
            a(f"v_add_f32_dpp v{P+t}, v{P+t}, v{P+t} row_ror:8 row_mask:0xf bank_mask:0x3")
        for t in range(8):
            a(f"v_add_f32_dpp v{P+t}, v{P+t+8}, v{P+t+8} row_ror:8 row_mask:0xf bank_mask:0xc")
        for t in range(4):
            a(f"v_add_f32_dpp v{P+t}, v{P+t}, v{P+t} row_half_mirror row_mask:0xf bank_mask:0x5")
        a("s_nop 0")
        for t in range(4):
            a(f"v_add_f32_dpp v{P+t}, v{P+t+4}, v{P+t+4} row_half_mirror row_mask:0xf bank_mask:0xa")
        a("s_nop 1")
        for t in range(4):
            a(f"v_add_f32_dpp v{P+t}, v{P+t}, v{P+t} quad_perm:[2,3,0,1] row_mask:0xf bank_mask:0xf")
        a(f"v_cndmask_b32_e64 v{P}, v{P}, v{P+2}, s[62:63]")
        a(f"v_cndmask_b32_e64 v{P+1}, v{P+1}, v{P+3}, s[62:63]")
        a("s_nop 1")
        a(f"v_add_f32_dpp v{P}, v{P}, v{P} quad_perm:[1,0,3,2] row_mask:0xf bank_mask:0xf")
        a(f"v_add_f32_dpp v{P+1}, v{P+1}, v{P+1} quad_perm:[1,0,3,2] row_mask:0xf bank_mask:0xf")
        a(f"v_cndmask_b32_e64 v{P}, v{P}, v{P+1}, s[64:65]")
        a(f"v_cvt_pk_bf16_f32 v{P}, v{P}, v{P}")
        a(f"v_and_b32 v{P}, 0xffff0000, v{P}")
        a(f"v_mul_f32 v{P}, s66, v{P}")
        a(f"v_cvt_pk_bf16_f32 v{P}, v{P}, v{P}")
        for i in range(7):
            a(f"v_mov_b32 v{S+i}, v{S+i+1}")
        a(f"v_and_b32 v{S+7}, 0xffff0000, v{P}")
    a("s_add_u32 s55, s55, 1")
    a(f"s_cmp_lt_u32 s55, {nit}")
    a("s_cbranch_scc1 L_kloop")
    stamp(3)
    a(f"v_max3_f32 v{T2}, v{S}, v{S+1}, v{S+2}")
    a(f"v_max3_f32 v{T2+1}, v{S+3}, v{S+4}, v{S+5}")
    a(f"v_max3_f32 v{T2}, v{T2}, v{S+6}, v{S+7}")
    a(f"v_max_f32 v{T2}, v{T2}, v{T2+1}")
    for ctl in ("row_ror:8", "row_ror:4", "row_ror:2", "row_ror:1"):
        a("s_nop 1")
        a(f"v_max_f32_dpp v{T2}, v{T2}, v{T2} {ctl} row_mask:0xf bank_mask:0xf")
    a("s_nop 1")
    a(f"v_max_f32_dpp v{T2}, v{T2}, v{T2} row_bcast:15 row_mask:0xa bank_mask:0xf")
    a("s_nop 1")
    a(f"v_max_f32_dpp v{T2}, v{T2}, v{T2} row_bcast:31 row_mask:0xc bank_mask:0xf")
    a("s_nop 1")
    a(f"v_readlane_b32 s56, v{T2}, 63")
    a("s_nop 1")
    for i in range(8):
        a(f"v_subrev_f32 v{S+i}, s56, v{S+i}")
    for i in range(8):
        a(f"v_mul_f32 v{S+i}, s67, v{S+i}")
    for i in range(8):
        a(f"v_exp_f32 v{S+i}, v{S+i}")
    a("s_nop 0")
    a(f"v_add_f32 v{T2}, v{S}, v{S+1}")
    a(f"v_add_f32 v{T2+1}, v{S+2}, v{S+3}")
    a(f"v_add_f32 v{T2+2}, v{S+4}, v{S+5}")
    a(f"v_add_f32 v{T2+3}, v{S+6}, v{S+7}")
    a(f"v_add_f32 v{T2}, v{T2}, v{T2+1}")
    a(f"v_add_f32 v{T2+2}, v{T2+2}, v{T2+3}")
    a(f"v_add_f32 v{T2+1}, v{T2}, v{T2+2}")
    for ctl in ("row_ror:8", "row_ror:4", "row_ror:2", "row_ror:1"):
        a("s_nop 1")
        a(f"v_add_f32_dpp v{T2+1}, v{T2+1}, v{T2+1} {ctl} row_mask:0xf bank_mask:0xf")
    a("s_nop 1")
    a(f"v_add_f32_dpp v{T2+1}, v{T2+1}, v{T2+1} row_bcast:15 row_mask:0xa bank_mask:0xf")
    a("s_nop 1")
    a(f"v_add_f32_dpp v{T2+1}, v{T2+1}, v{T2+1} row_bcast:31 row_mask:0xc bank_mask:0xf")
    a(f"v_mov_b32 v{T2}, s56")
    for i in range(8):
        a(f"v_cvt_pk_bf16_f32 v{S+i}, v{S+i}, v{S+i}")
    a("s_lshl_b32 s57, s33, 3")
    a(f"s_add_u32 s57, s57, {L_ML}")
    a("v_mov_b32 v13, s57")
    a(f"v_mov_b32 v14, {L_CNT}")
    a("v_mov_b32 v15, 1")
    a("s_mov_b32 exec_lo, 0")
    a("s_mov_b32 exec_hi, 0x80000000")
    a(f"ds_write_b64 v13, v[{T2}:{T2+1}]")
    a("ds_add_u32 v14, v15")
    a("s_mov_b64 exec, -1")
    for i in range(4):
        a(f"v_mov_b32 v{OA+i}, 0")
    stamp(4)
    def mkAv(tl, t, aset):
        for d in range(4):
            a(f"v_and_b32_dpp v{A0+4*aset+d}, v{S+tl}, v{M+d} row_newbcast:{t} row_mask:0xf bank_mask:0xf")
    def vbody(last, Ev, gn=99):
        mkAv(0, 0, 0)
        n = 0
        tot = tiles * 16
        for tl in range(tiles):
            for gq in range(4):
                gs = tl * 4 + gq
                a(f"s_waitcnt vmcnt({D-4-4*gs if last else D-4})")
                if fine: a("s_memrealtime s[90:91]")
                if not last and LV: a("ds_read_b32 v11, v14 offset:8")
                for i in range(4):
                    nn = n + 1
                    if nn < tot: mkAv(nn // 16, nn % 16, nn & 1)
                    elif not last:
                        for k in range(8 - tiles):
                            a(f"v_mov_b32 v{S+k}, v{S+k+tiles}")
                    else:
                        a("s_nop 1")
                    r = RING + 16 * gs + 4 * i
                    s = A0 + 4 * (n & 1)
                    a(f"v_mfma_f32_16x16x32_bf16 v[{OA}:{OA+3}], v[{s}:{s+3}], v[{r}:{r+3}], v[{OA}:{OA+3}]")
                    n += 1
                if not last: refill(gs, Ev if gs >= NG - gn else EV, bool(LV) and (gn == 99 or gs < NG - gn))
                fine_put()
    a("s_mov_b32 s55, 0")
    lab("L_vloop")
    tr = int(trig * nit // 4)
    def trigger():
        a("v_mov_b32 v15, 0x100")
        a("s_mov_b64 exec, 1")
        a("ds_add_u32 v14, v15")
        a("s_mov_b64 exec, -1")
    if tr < nit - 1 - nend:
        a(f"s_cmp_lg_u32 s55, {tr}")
        a("s_cbranch_scc1 L_v_notrig")
        trigger()
        lab("L_v_notrig")
    else:
        assert nend == 1 and tr == nit - 2
    vbody(False, EV)
    a("s_add_u32 s55, s55, 1")
    a(f"s_cmp_lt_u32 s55, {nit-1-nend}")
    a("s_cbranch_scc1 L_vloop")
    if nend:
        lab("L_vloop2")
        if tr == nit - 2: trigger()
        vbody(False, Eend, gend)
        if nend > 1:
            a("s_add_u32 s55, s55, 1")
            a(f"s_cmp_lt_u32 s55, {nit-1}")
            a("s_cbranch_scc1 L_vloop2")
    a("v_lshlrev_b32 v13, 5, v3")
    a("v_lshl_add_u32 v13, v4, 4, v13")
    a("s_lshl_b32 s54, s33, 9")
    a("v_add_u32 v13, s54, v13")
    vbody(True, 0)
    a("s_mov_b32 exec_hi, 0")
    a("s_nop 7")
    a(f"ds_write_b128 v13, v[{OA}:{OA+3}] offset:{L_OW}")
    a("s_waitcnt lgkmcnt(0)")
    stamp(5)
    a("s_barrier")
    if fine:
        a("s_mov_b64 exec, -1")
        a("s_lshl_b32 s54, s2, 2")
        a("s_add_u32 s54, s54, s33")
        a("s_lshl_b32 s54, s54, 8")
        a(f"s_add_u32 s54, s54, {WS_STAMP + 65536}")
        a("v_lshlrev_b32 v13, 2, v2")
        a("v_add_u32 v13, s54, v13")
        a("global_store_dword v13, v12, s[24:25]")
    if stamps:
        a("s_mov_b64 exec, -1")
        stamp_out("s32", 6)
    if padto:
        a(f"s_cmp_lg_u32 s2, 0")
        a("s_cbranch_scc1 L_end")
        a(f"s_add_u32 s94, s86, {padto}")
        lab("L_pad")
        a("s_sleep 2")
        a("s_memrealtime s[92:93]")
        a("s_waitcnt lgkmcnt(0)")
        a("s_sub_u32 s95, s94, s92")
        a("s_cmp_gt_i32 s95, 0")
        a("s_cbranch_scc1 L_pad")
    lab("L_end")
    a("s_endpgm")
    a('.section .rodata,"a"')
    a(".p2align 6")
    a(f".amdhsa_kernel {NAME}_kernel")
    a("  .amdhsa_next_free_vgpr 256")
    a("  .amdhsa_next_free_sgpr 100")
    a("  .amdhsa_accum_offset 256")
    a("  .amdhsa_group_segment_fixed_size 0")
    a("  .amdhsa_kernarg_size 104")
    a("  .amdhsa_user_sgpr_count 2")
    a("  .amdhsa_user_sgpr_kernarg_segment_ptr 1")
    a("  .amdhsa_system_sgpr_workgroup_id_x 1")
    a("  .amdhsa_float_denorm_mode_32 3")
    a(".end_amdhsa_kernel")
    out = []
    for l in L:
        if l.startswith((";", ".", "L_")) or l.endswith(":") or l.startswith("  ."): out.append(l)
        else: out.append("    " + l)
    return "\n".join(out) + "\n"

if __name__ == "__main__":
    cfgs = eval(sys.argv[1]) if len(sys.argv) > 1 else [dict()]
    names = []
    for c in cfgs:
        fn = "k_v4_" + "_".join(f"{k}{v}".replace(" ", "").replace("(", "").replace(")", "").replace(",", "x") for k, v in c.items()) + ".s"
        open("work/" + fn, "w").write(gen(**c))
        names.append(fn)
    print(" ".join(names))
    print(", ".join('"work/%s"' % o for o in names))
```

```python
import sys, math, struct
NAME = "concat_heads__mha_block_cached__gqa_block_cached__decode"

HDR = """; Kernarg layout for this problem (104 bytes, ptrs only, base s[0:1]):
"""

def f32hex(x):
    return "0x%08x" % struct.unpack("<I", struct.pack("<f", x))[0]

LOG2E = f32hex(1.4426950408889634)
SCALE = f32hex(128 ** -0.5)

L_QP = 0
L_ML = 2048
L_CNT = 2080
L_CW = 2096
L_OW = 2304
L_YB = 4352
YS = 2576
L_CQ = 2084
L_QB = 14848
LDS_BYTES = 16384
WS_ML = 0
B_ML = 0x60000
B_Q = 0x70000
WS_ACC = 65536
WS_AC2 = 65536 + 8 * 3072
WS_Q = 0x20000
WS_STAMP = 1 << 20
DBG_Z = 64
SPIN = 0x4000

def gen(D=32, E=6, woout=3, wflag=" nt", kvflag=" nt", stamps=False, trig=2, psleep=32,
        fine=False, sprio=0, padto=0, Epro=None, EV=None, nopub=0, latepub=0,
        seg=8, R=4, Eend=None, nend=0, sst=False, tst=False, hprio=2, skew=0, qsleep=8, qs0=24, xprio=3, nf=6, late=0, cnt=False, Eh=9, lv="N", bst=0, ns=16, smap=1, p1sleep=16, spread=0, pre=0, wob=None, wadj=0, kb=None, wosl=0, gend=8, sf='sc1', zlate=0, noqx=0, nozero=0, td=0, tg=0, dry=0, hwid=0, cyc=0, tb='n', tbor=0, rot=0, pm=(8,9,10,11,12,13,19,20), cfg=0, ab=0, ctl=0, cd=16, c0=32, csh=7, cb=0, Emin=5, Emax=9, cwo=8, owo=None, cstop=212, csl=8, cmid=24, csd=1, notail=0, notick=0, dly=0, lc=None, gt=0, gh=16, gsl=16, wi=None, wg=0, wl=8, wd=8, wsl=8, sp2=0, lw=0, t4=0, wr=10, wof='nt', ws=None, wm=None, wb1=0, of='x', fin=0):
    bar0 = True
    if isinstance(pm, str): pm = dict(A=(8,9,10,11,12,13,19,20), B=(8,9,10,11,12,13,14,15), C=(8,9,10,11,12,13,14,20), D=(8,9,10,11,12,13,14,16))[pm]
    SF = sf.replace('_', ' ')
    LV = dict(A=[(14, 0x55555555), (20, 0x6db6db6d), (25, 0x77777777), (29, 0x7f7f7f7f), (31, 0xffffffff)],
              B=[(18, 0x55555555), (24, 0x6db6db6d), (28, 0x77777777), (31, 0xffffffff)],
              C=[(10, 0x55555555), (16, 0x6db6db6d), (22, 0x77777777), (27, 0x7f7f7f7f), (30, 0xffffffff)],
              D=[(20, 0x55555555), (27, 0x77777777), (30, 0xffffffff)],
              E=[(8, 0x55555555), (14, 0x6db6db6d), (20, 0x77777777), (25, 0x7f7f7f7f), (28, 0xffffffff)],
              F=[(12, 0x55555555), (18, 0x77777777), (24, 0x7f7f7f7f), (28, 0xffffffff)],
              N=[])[lv]
    TBL = dict(a=[(16, 0x55555555), (22, 0x77777777), (26, 0xffffffff)],
               b=[(20, 0x55555555), (26, 0x77777777), (29, 0xffffffff)],
               c=[(24, 0xffffffff)],
               d=[(12, 0x55555555), (18, 0x77777777), (24, 0xffffffff)],
               e=[(8, 0x55555555), (14, 0x6db6db6d), (20, 0x77777777), (25, 0x7f7f7f7f), (28, 0xffffffff)],
               n=[])[tb]
    if lc:
        LV = [(0, 0)]
        Emin = min(min(lc), gh if gt else 99) // 4; Emax = -(-max(lc) // 4)
    BO = (bool(LV) or bool(TBL)) and not lc
    if ctl: assert not BO
    if qs0 is None: qs0 = qsleep
    assert R in (1, 2, 4)
    if EV is None: EV = E
    if Epro is None: Epro = E
    if Eend is None: Eend = EV
    NSEG = -(-640 // (seg - 1))
    NP = NSEG * seg
    assert NP <= 768
    L = []
    stream = [False]
    a = L.append
    def lab(s): L.append(s + ":")
    def stamp(i, kind=None):
        if kind == "w" and (sst or tst): return
        if kind == "s" and not sst: return
        if kind == "t" and not tst: return
        if kind is None and (sst or tst) and i in (2, 3, 4) and not stream[0]: return
        if kind is None and sst and i in (1, 2, 3, 4) and stream[0]: return
        if stamps:
            a(f"s_memrealtime s[{70+2*i}:{71+2*i}]")
            a("s_waitcnt lgkmcnt(0)")
    def stamp_out(slot, n):
        a("s_lshl_b32 s54, s2, 3")
        a(f"s_add_u32 s54, s54, {slot}")
        a("s_lshl_b32 s54, s54, 5")
        a(f"s_add_u32 s54, s54, {WS_STAMP}")
        if hwid:
            a("s_getreg_b32 s72, hwreg(HW_REG_HW_ID)")
            a("s_and_b32 s72, s72, 0xffff")
            a("s_mul_i32 s72, s72, 100")
            a("s_add_u32 s72, s72, s70")
        for i in range(8):
            a(f"v_mov_b32 v{16+i}, s{70+2*i}" if i < n else f"v_mov_b32 v{16+i}, 0")
        a("v_mov_b32 v3, s54")
        a("s_mov_b64 exec, 1")
        a("global_store_dwordx4 v3, v[16:19], s[24:25]")
        a("global_store_dwordx4 v3, v[20:23], s[24:25] offset:16")
    a(HDR.rstrip())
    a(f"; @launch grid=(256,1,1) block=(512,1,1) lds={LDS_BYTES}")
    a('.amdgcn_target "amdgcn-amd-amdhsa--gfx950"')
    a(".text")
    a(f".globl {NAME}_kernel")
    a(".p2align 8")
    a(f".type {NAME}_kernel,@function")
    a(f"{NAME}_kernel:")
    if padto: a("s_memrealtime s[86:87]")
    a("s_cmp_ge_u32 s2, 256")
    a("s_cbranch_scc1 L_end")
    if stamps: a("s_memrealtime s[70:71]")
    if cyc: a("s_memtime s[100:101]")
    a("s_and_b32 s26, s2, 7")
    a("s_lshr_b32 s27, s2, 3")
    a("s_and_b32 s28, s27, 3")
    a("s_lshr_b32 s29, s27, 2")
    if skew == 1:
        a("s_add_u32 s26, s26, s29")
        a("s_and_b32 s26, s26, 7")
    if skew == 3:
        a("s_xor_b32 s26, s26, s29")
    if skew == 4:
        a("s_lshl_b32 s3, s29, 1")
        a("s_lshr_b32 s4, s29, 2")
        a("s_or_b32 s3, s3, s4")
        a("s_and_b32 s3, s3, 7")
        a("s_xor_b32 s26, s26, s3")
    if skew == 5:
        a("s_lshl_b32 s3, s29, 2")
        a("s_lshr_b32 s4, s29, 1")
        a("s_or_b32 s3, s3, s4")
        a("s_and_b32 s3, s3, 7")
        a("s_xor_b32 s26, s26, s3")
    if skew == 6:
        a("s_mul_i32 s3, s29, 3")
        a("s_add_u32 s26, s26, s3")
        a("s_and_b32 s26, s26, 7")
    if skew == 2:
        a("s_lshl_b32 s26, s26, 2")
        a("s_and_b32 s3, s29, 3")
        a("s_add_u32 s26, s26, s3")
        a("s_lshr_b32 s29, s29, 2")
        a("s_lshl_b32 s29, s29, 5")
    else:
        a("s_lshl_b32 s29, s29, 3")
    a("s_add_u32 s29, s29, s26")
    a("s_lshr_b32 s31, s29, 5")
    a("s_mul_i32 s3, s31, 40")
    a("s_load_dwordx8 s[8:15], s[0:1], s3")
    a("s_load_dwordx2 s[16:17], s[0:1], s3 offset:32")
    a("s_load_dwordx4 s[20:23], s[0:1], 80")
    a("s_load_dwordx2 s[24:25], s[0:1], 96")
    a("s_and_b32 s30, s29, 31")
    a("v_lshrrev_b32 v1, 6, v0")
    a("v_and_b32 v2, 63, v0")
    a("v_readfirstlane_b32 s32, v1")
    a("v_and_b32 v3, 15, v0")
    a("v_bfe_u32 v4, v0, 4, 2")
    a("v_and_b32 v5, 1, v0")
    a("v_lshlrev_b32 v5, 4, v5")
    a("v_mov_b32 v6, 0xffff")
    a("v_lshlrev_b32 v6, v5, v6")
    a("v_lshrrev_b32 v7, 1, v3")
    for d in range(4):
        a(f"v_cmp_eq_u32 vcc, {d}, v7")
        a("s_nop 1")
        a(f"v_cndmask_b32 v{56+d}, 0, v6, vcc")
    a("s_cmp_ge_u32 s32, 4")
    a("s_cbranch_scc1 L_stream")

    XP = 16
    SEL = 36
    AS = 44
    ACC = 60
    T = 80
    W = 96
    if hprio: a(f"s_setprio {hprio}")
    a("v_mul_u32_u24 v8, 80, v4")
    a("s_mul_i32 s52, s32, 320")
    a("s_mul_i32 s55, s28, 20")
    a("s_add_u32 s52, s52, s55")
    a("v_min_u32 v5, 4, v3")
    a("v_lshl_add_u32 v5, v5, 2, v8")
    a("v_mul_u32_u24 v9, 0x50000, v4")
    a("v_lshl_add_u32 v9, v3, 4, v9")
    a("s_mul_i32 s53, s32, 0x140000")
    a("s_lshl_b32 s54, s30, 8")
    a("s_add_u32 s53, s53, s54")
    a("s_mul_i32 s55, s28, 0x14000")
    a("s_add_u32 s56, s55, s53")
    for i in range(4): a(f"v_mov_b32 v{T+i}, 0")
    a(f"v_mov_b32 v14, {L_CNT}")
    if ctl or lc:
        for i in range(3): a(f"v_mov_b32 v{T+4+i}, 0")
        a(f"v_mov_b32 v{T+7}, {cmid}")
        a(f"ds_write_b128 v14, v[{T+4}:{T+7}]")
    else: a(f"ds_write_b128 v14, v[{T}:{T+3}]")
    a("v_lshlrev_b32 v15, 4, v2")
    QA = 36
    SN = W + 40
    XT = W + 56
    if spread == 1:
        a("s_and_b32 s34, s2, 3")
        a("s_lshl_b32 s34, s34, 19")
        a("s_lshr_b32 s54, s2, 5")
        a("s_lshl_b32 s54, s54, 21")
        a("s_or_b32 s34, s34, s54")
        a("s_and_b32 s54, s2, 4")
        a("s_lshl_b32 s54, s54, 23")
        a("s_or_b32 s34, s34, s54")
    elif spread == 2:
        a("s_and_b32 s34, s2, 3")
        a("s_lshl_b32 s34, s34, 19")
        a("s_and_b32 s54, s2, 4")
        a("s_lshl_b32 s54, s54, 23")
        a("s_or_b32 s34, s34, s54")
    else:
        a("s_mov_b32 s34, 0")
    if spread == 1:
        a("s_lshl_b32 s54, s30, 11")
        a(f"s_add_u32 s54, s54, {B_Q}")
    elif spread == 2:
        a("s_lshr_b32 s54, s2, 5")
        a("s_lshl_b32 s54, s54, 11")
        a("s_and_b32 s55, s2, 3")
        a("s_lshl_b32 s55, s55, 14")
        a("s_add_u32 s54, s54, s55")
        a(f"s_add_u32 s54, s54, {B_Q}")
    else:
        a("s_lshl_b32 s54, s29, 11")
        a(f"s_add_u32 s54, s54, {WS_Q}")
    a("s_add_u32 s54, s54, s34")
    a("s_lshl_b32 s55, s28, 9")
    a("s_add_u32 s54, s54, s55")
    a("s_lshl_b32 s55, s2, 7")
    a("s_add_u32 s34, s34, s55")
    a(f"s_add_u32 s34, s34, {B_ML}")
    a(f"v_add_u32 v{QA}, s54, v15")
    for i in range(1, 4):
        a(f"v_xor_b32 v{QA+i}, {512*i}, v{QA}")
    a("s_cmp_lg_u32 s32, 0")
    a("s_waitcnt lgkmcnt(0)")
    stamp(2, "s")
    a("s_cbranch_scc1 L_h_nosnap")
    if late:
        a(f"s_cmp_lg_u32 s28, 2")
        a("s_cbranch_scc1 L_h_nolate")
        for i in range(late): a("s_sleep 127")
        lab("L_h_nolate")
    a("s_mov_b32 exec_hi, 0")
    for i in range(4):
        a(f"global_load_dwordx4 v[{SN+4*i}:{SN+4*i+3}], v{QA+i}, s[24:25] sc1")
    a("s_mov_b64 exec, -1")
    lab("L_h_nosnap")
    a("s_mov_b32 s36, s8")
    a("s_mov_b32 s37, s9")
    a("s_mov_b32 s38, 1280")
    a("s_mov_b32 s39, 0x20000")
    a("s_mov_b32 s40, s14")
    a("s_mov_b32 s41, s15")
    a("s_mov_b32 s42, 5242880")
    a("s_mov_b32 s43, 0x20000")
    a(f"buffer_load_dword v{XP}, v5, s[36:39], s52 offen")
    for t in range(10):
        a(f"buffer_load_dwordx4 v[{W+4*t}:{W+4*t+3}], v9, s[40:43], s56 offen{wflag}")
        if t < 9: a("s_add_u32 s56, s56, 0x2000")
    a("s_barrier")
    a("s_mov_b32 s57, 0x01000100")
    a("s_mov_b32 s58, 0x03020302")
    a("s_mov_b32 s44, s16")
    a("s_mov_b32 s45, s17")
    a("s_mov_b32 s46, 5242880")
    a("s_mov_b32 s47, 0x20000")
    a("v_lshlrev_b32 v13, 5, v3")
    a("v_lshl_add_u32 v13, v4, 4, v13")
    a("s_lshl_b32 s54, s32, 9")
    a("v_add_u32 v14, s54, v13")
    a(f"v_mov_b32 v10, {L_CQ}")
    a("v_mov_b32 v11, 1")
    a("s_waitcnt vmcnt(10)")
    a(f"v_perm_b32 v{XP+2}, v{XP}, v{XP}, s57")
    a(f"v_perm_b32 v{XP+3}, v{XP}, v{XP}, s58")
    a("s_nop 1")
    def mkA(t):
        s = AS + 4 * (t & 1)
        for d in range(4):
            a(f"v_and_b32_dpp v{s+d}, v{XP + 2 + (t & 1)}, v{56+d} row_newbcast:{t >> 1} row_mask:0xf bank_mask:0xf")
    mkA(0)
    for t in range(10):
        if t + 1 < 10: mkA(t + 1)
        else: a("s_nop 1")
        a(f"s_waitcnt vmcnt({9 - t})")
        s = AS + 4 * (t & 1)
        c = "0" if t == 0 else f"v[{ACC}:{ACC+3}]"
        a(f"v_mfma_f32_16x16x32_bf16 v[{ACC}:{ACC+3}], v[{s}:{s+3}], v[{W+4*t}:{W+4*t+3}], {c}")
    a("s_cmp_lg_u32 s32, 0")
    a("s_cbranch_scc1 L_h_nopz")
    a(f"s_setprio {xprio}")
    lab("L_h_nopz")
    a("s_mov_b32 exec_lo, -1")
    a("s_mov_b32 exec_hi, 0")
    a("s_nop 4")
    a(f"ds_write_b128 v14, v[{ACC}:{ACC+3}] offset:{L_QP}")
    a("s_mov_b64 exec, 1")
    a("ds_add_u32 v10, v11")
    a("s_mov_b64 exec, -1")
    a("s_cbranch_scc0 L_h_w0")
    def zero_duty(out):
        a("s_cmp_lg_u32 s32, 1")
        a(f"s_cbranch_scc1 {out}")
        a("s_cmp_ge_u32 s2, 8")
        a(f"s_cbranch_scc1 {out}")
        a("v_lshlrev_b32 v15, 4, v2")
        a("s_mul_i32 s54, s2, 3072")
        a(f"s_add_u32 s54, s54, {WS_ACC}")
        if sp2:
            a("s_lshl_b32 s55, s2, 12")
            a(f"s_add_u32 s55, s55, {WS_AC2}")
            a("v_lshrrev_b32 v13, 2, v2")
            a("v_lshlrev_b32 v13, 8, v13")
            a("v_and_b32 v14, 48, v15")
            a("v_add3_u32 v13, s55, v13, v14")
        else:
            a("s_lshl_b32 s55, s2, 10")
            a(f"s_add_u32 s55, s55, {WS_AC2}")
            a("v_add_u32 v13, s55, v15")
        a("v_add_u32 v15, s54, v15")
        a("v_lshlrev_b32 v14, 10, v2")
        a("v_add_u32 v14, s34, v14")
        if spread == 1:
            a("v_lshrrev_b32 v12, 2, v2")
            a("v_lshl_add_u32 v14, v12, 21, v14")
        if not nozero:
            for c in range(3 if R > 1 else 0):
                a(f"global_store_dwordx4 v15, v[{T}:{T+3}], s[24:25] offset:{1024*c} {SF}")
            a(f"global_store_dwordx4 v13, v[{T}:{T+3}], s[24:25] {SF}")
            a("s_mov_b32 exec_hi, 0")
            a(f"global_store_dwordx2 v14, v[{T}:{T+1}], s[24:25] offset:{WS_ML} {SF}")
        a("s_mov_b64 exec, 1")
        a(f"v_mov_b32 v{T+5}, {DBG_Z}")
        a("s_waitcnt vmcnt(0)")
        a(f"global_atomic_add v{T+5}, v11, s[22:23]")
        a("s_mov_b64 exec, -1")
    if not zlate: zero_duty("L_h_bar1")
    a("s_branch L_h_bar1")
    lab("L_h_w0")
    stamp(3, "s")
    a("s_mov_b32 s61, 0")
    lab("L_h_pollq")
    a(f"ds_read_b32 v{T}, v10")
    a("s_waitcnt lgkmcnt(0)")
    a(f"v_readfirstlane_b32 s54, v{T}")
    a("s_add_u32 s61, s61, 1")
    a("s_nop 2")
    a("s_cmp_ge_u32 s54, 4")
    a("s_cbranch_scc1 L_h_pollqx")
    a("s_sleep 1")
    a(f"s_cmp_lt_u32 s61, {SPIN * 16}")
    a("s_cbranch_scc1 L_h_pollq")
    lab("L_h_pollqx")
    a("s_mov_b32 exec_hi, 0")
    for u in range(4):
        a(f"ds_read_b128 v[{XP+4*u}:{XP+4*u+3}], v15 offset:{L_QP + 512*u}")
    for i in range(4):
        a(f"v_not_b32 v{SN+i}, v{SN+i}")
    a("s_mov_b32 s58, 0")
    a("s_mov_b32 s59, 0")
    a("s_mov_b32 s60, 0")
    a("s_waitcnt lgkmcnt(0)")
    for i in range(4):
        a(f"v_add_f32 v{XP+i}, v{XP+i}, v{XP+4+i}")
        a(f"v_add_f32 v{XP+8+i}, v{XP+8+i}, v{XP+12+i}")
    for i in range(4):
        a(f"v_add_f32 v{XP+i}, v{XP+i}, v{XP+8+i}")
    for i in range(4):
        a(f"v_bfi_b32 v{T+i}, 1, v{SN+i}, v{XP+i}")
    if not noqx: a(f"global_store_dwordx4 v{QA}, v[{T}:{T+3}], s[24:25] {SF}")
    else:
        for i in range(1, 4): a(f"s_mov_b32 s{57+i}, 1")
    stamp(4, "s")
    a("s_mov_b32 s61, 0")
    a(f"v_mov_b32 v12, {DBG_Z}")
    a("v_lshlrev_b32 v13, 10, v2")
    a("v_xor_b32 v13, s34, v13")
    if qs0: a(f"s_sleep {qs0}")
    lab("L_h_pollx")
    for i in range(1, 4):
        a(f"global_load_dwordx4 v[{XP+4*i}:{XP+4*i+3}], v{QA+i}, s[24:25] sc1")
    a("s_add_u32 s61, s61, 1")
    for i in range(1, 4):
        a(f"s_waitcnt vmcnt({3-i})")
        for k in range(4):
            a(f"v_xor_b32 v{XT+4*(i-1)+k}, v{XP+4*i+k}, v{SN+4*i+k}")
        b = XT + 4 * (i - 1)
        a(f"v_and_b32 v{b}, v{b}, v{b+1}")
        a(f"v_and_b32 v{b+2}, v{b+2}, v{b+3}")
        a(f"v_and_or_b32 v{b}, v{b}, v{b+2}, s{57+i}")
    a(f"v_and_b32 v{XT}, v{XT}, v{XT+4}")
    a(f"v_and_b32 v{XT+8}, 1, v{XT+8}")
    a(f"v_and_b32 v{XT}, v{XT}, v{XT+8}")
    a(f"v_cmp_eq_u32 vcc, 0, v{XT}")
    a("s_cbranch_vccz L_h_gotq")
    a(f"s_sleep {qsleep}")
    a(f"s_cmp_lt_u32 s61, {nf}")
    a("s_cbranch_scc1 L_h_pollx")
    a("s_mov_b64 exec, 1")
    a(f"global_load_dword v{XT}, v12, s[22:23] sc1")
    a("s_waitcnt vmcnt(0)")
    a(f"v_readfirstlane_b32 s54, v{XT}")
    a("s_mov_b32 exec_lo, 15")
    a("s_nop 2")
    a("s_cmp_lt_u32 s54, 8")
    a("s_cbranch_scc1 L_h_nofl")
    a(f"global_load_dword v{XT}, v13, s[24:25] offset:{WS_ML + 4} sc1")
    a("s_waitcnt vmcnt(0)")
    a(f"v_cmp_ne_u32 vcc, 0, v{XT}")
    a("s_nop 3")
    for i in range(1, 4):
        a(f"s_bfe_u32 s{57+i}, vcc_lo, {(1 << 16) | i}")
    lab("L_h_nofl")
    a("s_mov_b32 exec_lo, -1")
    a(f"s_sleep {psleep}")
    a(f"s_cmp_lt_u32 s61, {SPIN}")
    a("s_cbranch_scc1 L_h_pollx")
    lab("L_h_gotq")
    if cnt:
        a("s_mul_i32 s74, s61, 100")
        a("s_add_u32 s74, s74, s70")
    for i in range(16):
        a(f"v_and_b32 v{XP+i}, -2, v{XP+i}")
    for i in range(4):
        a(f"v_add_f32 v{XP+i}, v{XP+i}, v{XP+4+i}")
        a(f"v_add_f32 v{XP+8+i}, v{XP+8+i}, v{XP+12+i}")
    for i in range(4):
        a(f"v_add_f32 v{XP+i}, v{XP+i}, v{XP+8+i}")
    a("v_lshlrev_b32 v14, 3, v2")
    a(f"v_cvt_pk_bf16_f32 v{T}, v{XP}, v{XP+1}")
    a(f"v_cvt_pk_bf16_f32 v{T+1}, v{XP+2}, v{XP+3}")
    a(f"ds_write_b64 v14, v[{T}:{T+1}] offset:{L_QB}")
    a("s_mov_b64 exec, -1")
    lab("L_h_bar1")
    a("s_waitcnt lgkmcnt(0)")
    stamp(1)
    if not wb1:
        a("s_barrier")
        a("s_setprio 0")
    if t4:
        assert R == 1 and sp2 and not td and seg == 8
        T = 40
        a("v_lshrrev_b32 v5, 3, v2")
        a("v_mul_u32_u24 v5, 7, v5")
        a("v_and_b32 v6, 7, v2")
        a("v_min_u32 v6, 6, v6")
        a("v_add_u32 v5, v5, v6")
        a("v_mul_u32_u24 v61, 3, v5")
        a("v_and_b32 v62, 1, v5")
        a("v_lshlrev_b32 v1, 1, v61")
        a("v_and_b32 v1, -4, v1")
        a("v_min_u32 v1, 0x138, v1")
        a("v_cmp_eq_u32 s[62:63], 1, v62")
        a("s_mov_b32 s57, 0x07060302")
        a("s_mov_b32 s58, 0x05040100")
        a("v_mov_b32 v60, s58")
        a("v_mov_b32 v6, s57")
        a("s_mul_i32 s53, s30, 163840")
        a("s_mul_i32 s54, s32, 320")
        a("s_add_u32 s53, s53, s54")
        if ws is not None:
            a("s_cmp_eq_u32 s32, 0")
            a("s_cselect_b64 vcc, -1, 0")
        a("v_cndmask_b32_e64 v60, v60, v6, s[62:63]")
        RG = 16
        assert wr % 2 == 0 and RG + 2 * wr <= 40
        def wld(r):
            d = RG + 2 * (r % wr)
            if wm is not None and r >= wm: a(f"s_waitcnt vmcnt({wm-1})")
            a(f"buffer_load_dwordx2 v[{d}:{d+1}], v1, s[44:47], s53 offen offset:{1280 * (r & 3)} {wof.replace('_', ' ').replace('x', '')}")
            if r & 3 == 3 and r < 127: a("s_add_u32 s53, s53, 5120")
        for r in range(wr):
            wld(r)
            if wb1 and r == wb1 - 1:
                a("s_barrier")
                a("s_setprio 0")
        for P in range(64):
            A_ = RG + 2 * ((2 * P) % wr); B_ = A_ + 2
            a(f"s_waitcnt vmcnt({min(wr - 2, 126 - 2 * P)})")
            o = 64 + (P >> 1) * 6 + (P & 1)
            a(f"v_cndmask_b32_e64 v56, v{A_}, v{A_+1}, s[62:63]")
            a(f"v_cndmask_b32_e64 v57, v{B_}, v{B_+1}, s[62:63]")
            a(f"v_perm_b32 v{o}, v{B_}, v{A_}, s57")
            a(f"v_perm_b32 v{o+2}, v{B_+1}, v{A_+1}, s58")
            a(f"v_perm_b32 v{o+4}, v57, v56, v60")
            if ws is not None and 2 * P + wr < 128:
                a(f"s_cbranch_vccnz L_wf{P}")
                a(f"s_waitcnt vmcnt({ws})")
                lab(f"L_wf{P}")
            for r in (2 * P + wr, 2 * P + wr + 1):
                if r < 128: wld(r)
        stamp(2, "w")
    cutw = len(L)
    a(f"v_mul_u32_u24 v9, {1280 if wadj else 10240}, v4")
    a("v_lshl_add_u32 v9, v3, 4, v9")
    a("s_lshl_b32 s53, s30, 7")
    a("s_lshl_b32 s54, s32, 5")
    a("s_add_u32 s53, s53, s54")
    a("s_mul_i32 s53, s53, 1280")
    def woloads(rqs, woout=woout):
        for rq in rqs:
            for sg in range(5):
                r = W + 4 * (rq * 5 + sg)
                if wob is not None:
                    if sg == 0:
                        a(f"s_waitcnt vmcnt({wob})")
                        if wosl: a(f"s_sleep {wosl}")
                elif woout: a(f"s_waitcnt vmcnt({woout-1})")
                a(f"buffer_load_dwordx4 v[{r}:{r+3}], v9, s[44:47], s53 offen offset:{sg*256}{wflag}")
            if rq < 7: a(f"s_add_u32 s53, s53, {5120 if wadj else 1280}")
    def zpoll(tag):
        a("s_mov_b64 exec, 1")
        a(f"v_mov_b32 v12, {DBG_Z}")
        a("s_mov_b32 s61, 0")
        lab(f"L_{tag}_pollz")
        a(f"global_load_dword v{T+15}, v12, s[22:23] sc1")
        a("s_waitcnt vmcnt(0)")
        a(f"v_readfirstlane_b32 s60, v{T+15}")
        a("s_add_u32 s61, s61, 1")
        a("s_nop 2")
        a("s_cmp_ge_u32 s60, 8")
        a(f"s_cbranch_scc1 L_{tag}_zok")
        a(f"s_sleep {psleep}")
        a(f"s_cmp_lt_u32 s61, {SPIN}")
        a(f"s_cbranch_scc1 L_{tag}_pollz")
        lab(f"L_{tag}_zok")
    if zlate:
        woloads(range(zlate))
        zero_duty("L_h_zl")
        lab("L_h_zl")
        woloads(range(zlate, 8))
    elif wi is not None:
        woloads(range(8 - wl))
        if wl < 8 and False: pass
        a("s_cmp_eq_u32 s32, 0")
        a("s_cbranch_scc1 L_w_now")
        a(f"v_mov_b32 v14, {L_CNT}")
        a("s_mov_b32 s61, 0")
        lab("L_w_poll")
        a("ds_read_b32 v5, v14 offset:4")
        a("s_add_u32 s61, s61, 1")
        a("s_waitcnt lgkmcnt(0)")
        a("v_readfirstlane_b32 s54, v5")
        a("s_nop 3")
        a("s_cmp_ge_u32 s54, 0x100")
        a("s_cbranch_scc1 L_w_go")
        a(f"s_sleep {wsl}")
        a(f"s_cmp_lt_u32 s61, {SPIN}")
        a("s_cbranch_scc1 L_w_poll")
        lab("L_w_go")
        stamp(2)
        woloads(range(8 - wl, 8), wd)
        if stamps:
            a("s_waitcnt vmcnt(0)")
            stamp(3)
        a("s_branch L_h_bar2")
        lab("L_w_now")
        woloads(range(8 - wl, 8))
    elif ctl:
        a("s_cmp_eq_u32 s32, 1")
        a("s_cbranch_scc1 L_c")
        woloads(range(8), owo if owo is not None else woout)
    else: woloads(range(8))
    if t4: del L[cutw:]
    a("s_cmp_lg_u32 s32, 0")
    a("s_cbranch_scc1 L_h_bar2")
    if smap == 0:
        a("v_mov_b32 v5, v2")
    else:
        a("v_and_b32 v5, 7, v2")
        if smap == 1:
            a("v_and_b32 v6, 24, v2")
            a("v_lshl_or_b32 v5, v6, 3, v5")
        else:
            a("v_and_b32 v6, 12, v2")
            a("v_lshl_or_b32 v5, v6, 4, v5")
        a("v_and_b32 v6, 6, v2")
        a("v_lshl_or_b32 v5, v6, 2, v5")
        a("v_and_b32 v6, 1, v2")
        a("v_lshl_or_b32 v5, v6, 5, v5")
    a("v_lshlrev_b32 v6, 7, v5")
    if spread:
        a("v_and_b32 v7, 3, v5")
        a("v_lshl_or_b32 v6, v7, 19, v6")
        a("v_and_b32 v7, 4, v5")
        a("v_lshl_or_b32 v6, v7, 23, v6")
    if spread == 1:
        a("v_lshrrev_b32 v7, 5, v5")
        a("v_lshl_or_b32 v6, v7, 21, v6")
    a("v_xor_b32 v5, s34, v6")
    zpoll("h")
    a(f"v_mov_b32 v14, {L_CNT}")
    a("s_mov_b32 s61, 0")
    lab("L_h_poll1")
    a(f"ds_read_b32 v{T}, v14")
    a("s_waitcnt lgkmcnt(0)")
    a(f"v_readfirstlane_b32 s54, v{T}")
    a("s_add_u32 s61, s61, 1")
    a("s_nop 2")
    a("s_and_b32 s54, s54, 0xff")
    a("s_cmp_ge_u32 s54, 4")
    a("s_cbranch_scc1 L_h_poll1x")
    a(f"s_sleep {p1sleep}")
    a(f"s_cmp_lt_u32 s61, {SPIN}")
    a("s_cbranch_scc1 L_h_poll1")
    lab("L_h_poll1x")
    stamp(2)
    if LV:
        a("s_mov_b32 exec_lo, 0x%x" % (((1 << ns) - 1) & ~1))
        a(f"global_load_dword v6, v5, s[24:25] offset:{WS_ML + 4} sc1")
        a("s_mov_b64 exec, 1")
    a(f"v_mov_b32 v14, {L_ML}")
    a(f"ds_read_b128 v[{T}:{T+3}], v14")
    a(f"ds_read_b128 v[{T+4}:{T+7}], v14 offset:16")
    a(f"s_mov_b32 s55, {LOG2E}")
    a("s_waitcnt lgkmcnt(0)")
    a(f"v_max3_f32 v{T+8}, v{T}, v{T+2}, v{T+4}")
    a(f"v_max_f32 v{T+8}, v{T+8}, v{T+6}")
    for w in range(4):
        a(f"v_sub_f32 v{T+10+w}, v{T+2*w}, v{T+8}")
    for w in range(4):
        a(f"v_mul_f32 v{T+10+w}, s55, v{T+10+w}")
    for w in range(4):
        a(f"v_exp_f32 v{T+10+w}, v{T+10+w}")
    a("s_nop 0")
    a(f"v_mul_f32 v{T+9}, v{T+10}, v{T+1}")
    for w in range(1, 4):
        a(f"v_fmac_f32 v{T+9}, v{T+10+w}, v{T+2*w+1}")
    a("s_andn2_b32 s54, s34, 0xc00")
    a(f"v_mov_b32 v13, s34")
    a(f"v_mov_b32 v15, s54")
    def publish():
        if nopub & 1: return
        a(f"global_store_dwordx2 v13, v[{T+8}:{T+9}], s[24:25] offset:{WS_ML} {SF}")
    if not latepub: publish()
    stamp(3)
    if LV:
        a("s_mov_b32 exec_lo, 0x%x" % (((1 << ns) - 1) & ~1))
        a("s_mov_b32 s57, 0")
        a("s_waitcnt vmcnt(1)")
        a("v_cmp_ne_u32 vcc, 0, v6")
        a("s_mov_b64 exec, 1")
        a(f"v_mov_b32 v14, {L_CNT}")
        a("s_nop 1")
        a("s_bcnt1_i32_b32 s54, vcc_lo")
        if bst:
            a("s_mul_i32 s76, s54, 100")
            a("s_add_u32 s76, s76, s70")
        if lc:
            a(f"s_mov_b32 s57, {lc[0]}")
            for t in range(1, len(lc)):
                if lc[t] != lc[t-1]:
                    a(f"s_cmp_ge_u32 s54, {t * 16 // len(lc)}")
                    a(f"s_cselect_b32 s57, {lc[t]}, s57")
            if gt:
                a(f"s_cmp_ge_u32 s54, {gt}")
                a("s_cbranch_scc1 L_g_rel")
                a(f"v_mov_b32 v6, {gh}")
                a("ds_write_b32 v14, v6 offset:12")
                a("s_mov_b32 s61, 0")
                lab("L_g_poll")
                a(f"s_sleep {gsl}")
                a(f"ds_read_b32 v{T+14}, v14")
                a("s_mov_b32 exec_lo, 0x%x" % (((1 << ns) - 1) & ~1))
                a(f"global_load_dword v6, v5, s[24:25] offset:{WS_ML + 4} sc1")
                a("s_add_u32 s61, s61, 1")
                a("s_waitcnt vmcnt(0) lgkmcnt(0)")
                a("v_cmp_ne_u32 vcc, 0, v6")
                a("s_mov_b64 exec, 1")
                a(f"v_readfirstlane_b32 s59, v{T+14}")
                a("s_nop 1")
                a("s_bcnt1_i32_b32 s54, vcc_lo")
                a(f"s_cmp_ge_u32 s54, {gt}")
                a("s_cbranch_scc1 L_g_rel")
                a("s_cmp_ge_u32 s59, 0x100")
                a("s_cbranch_scc1 L_g_rel")
                a(f"s_cmp_lt_u32 s61, {SPIN}")
                a("s_cbranch_scc1 L_g_poll")
                lab("L_g_rel")
            a("v_mov_b32 v6, s57")
            a("ds_write_b32 v14, v6 offset:12")
        else:
            for t, m in LV:
                a(f"s_cmp_ge_u32 s54, {(t + 1) * ns // 32 - 1}")
                a(f"s_cselect_b32 s57, 0x{m:x}, s57")
            a("v_mov_b32 v6, s57")
            a("ds_write_b32 v14, v6 offset:8")
    a(f"v_mov_b32 v14, {L_CNT}")
    a("s_mov_b32 s61, 0")
    lab("L_h_poll1b")
    a(f"ds_read_b32 v{T+14}, v14")
    a("s_waitcnt lgkmcnt(0)")
    a(f"v_readfirstlane_b32 s54, v{T+14}")
    a("s_add_u32 s61, s61, 1")
    a("s_nop 2")
    a("s_cmp_ge_u32 s54, 0x100")
    a("s_cbranch_scc1 L_h_poll1bx")
    a("s_sleep 16")
    a(f"s_cmp_lt_u32 s61, {SPIN}")
    a("s_cbranch_scc1 L_h_poll1b")
    lab("L_h_poll1bx")
    if latepub: publish()
    if td:
        a(f"s_and_b32 s54, s27, {R-1}")
        if sp2:
            a(f"s_lshl_b32 s59, s31, 6")
            a("s_add_u32 s54, s54, s59")
            a("s_lshl_b32 s54, s54, 8")
            a(f"s_add_u32 s54, s54, {WS_AC2 + 48 * 256}")
        else:
            a(f"s_lshl_b32 s59, s31, 2")
            a("s_add_u32 s54, s54, s59")
            a("s_mul_i32 s54, s54, 3072")
            a(f"s_add_u32 s54, s54, {WS_ACC + 2944}")
        a("v_mov_b32 v6, s54")
        a("v_mov_b32 v7, 1.0")
        if not notick: a("global_atomic_add_f32 v7, v6, v7, s[24:25] sc0")
        if TBL:
            if not (tbor and LV): a("s_mov_b32 s57, 0")
            a("s_mov_b32 s59, 0")
            a("s_waitcnt vmcnt(0)")
            a("v_cvt_u32_f32 v6, v7")
            a("s_nop 1")
            a("v_readfirstlane_b32 s54, v6")
            a("s_nop 3")
            for t, m in TBL:
                a(f"s_cmp_ge_u32 s54, {t}")
                a(f"s_cselect_b32 s59, 0x{m:x}, s59")
            a("s_or_b32 s57, s57, s59")
            a("v_mov_b32 v6, s57")
            a("ds_write_b32 v14, v6 offset:8")
    a("s_mov_b32 s61, 0")
    lab("L_h_poll2")
    if nopub & 2: a("s_branch L_h_got")
    for s in range(4):
        a(f"global_load_dwordx2 v[{XP+2*s}:{XP+2*s+1}], v15, s[24:25] offset:{WS_ML + 1024*s} sc1")
    a("s_waitcnt vmcnt(0)")
    a(f"v_min_u32 v{XP+8}, v{XP+1}, v{XP+3}")
    a(f"v_min3_u32 v{XP+8}, v{XP+8}, v{XP+5}, v{XP+7}")
    a("s_add_u32 s61, s61, 1")
    a(f"v_readfirstlane_b32 s59, v{XP+8}")
    a("s_nop 3")
    a("s_cmp_lg_u32 s59, 0")
    a("s_cbranch_scc1 L_h_got")
    a(f"s_sleep {psleep}")
    a(f"s_cmp_lt_u32 s61, {SPIN}")
    a("s_cbranch_scc1 L_h_poll2")
    lab("L_h_got")
    stamp(4)
    a(f"v_max3_f32 v{XP+8}, v{XP}, v{XP+2}, v{XP+4}")
    a(f"v_max_f32 v{XP+8}, v{XP+8}, v{XP+6}")
    for s in range(4):
        a(f"v_sub_f32 v{XP+10+s}, v{XP+2*s}, v{XP+8}")
    for s in range(4):
        a(f"v_mul_f32 v{XP+10+s}, s55, v{XP+10+s}")
    for s in range(4):
        a(f"v_exp_f32 v{XP+10+s}, v{XP+10+s}")
    a("s_nop 0")
    a(f"v_mul_f32 v{XP+9}, v{XP+10}, v{XP+1}")
    for s in range(1, 4):
        a(f"v_fmac_f32 v{XP+9}, v{XP+10+s}, v{XP+2*s+1}")
    a(f"v_rcp_f32 v{XP+9}, v{XP+9}")
    for w in range(4):
        a(f"v_sub_f32 v{XP+12+w}, v{T+2*w}, v{XP+8}")
    for w in range(4):
        a(f"v_mul_f32 v{XP+12+w}, s55, v{XP+12+w}")
    for w in range(4):
        a(f"v_exp_f32 v{XP+12+w}, v{XP+12+w}")
    a("s_nop 0")
    for w in range(4):
        a(f"v_mul_f32 v{XP+12+w}, v{XP+12+w}, v{XP+9}")
    a(f"v_mov_b32 v14, {L_CW}")
    a(f"ds_write_b128 v14, v[{XP+12}:{XP+15}]")
    if td: a("ds_write_b32 v14, v7 offset:16")
    a("s_mov_b64 exec, -1")
    a("s_waitcnt lgkmcnt(0)")
    lab("L_h_bar2")
    if t4:
        CO = 8; AO = 36; CW = 40; AC = 44; Y = 16; O1 = 20; TB = 24
        a(f"v_mov_b32 v14, {L_CW}")
        a("v_lshlrev_b32 v15, 4, v2")
        a("v_and_b32 v5, 7, v2")
        a("v_cmp_eq_u32 s[58:59], 7, v5")
        a("v_sub_u32 v6, v61, v62")
        a(f"v_add_u32 v{CO}, 1, v6")
        a(f"v_add_u32 v{CO+1}, 2, v6")
        a(f"v_lshl_add_u32 v{CO+2}, v62, 1, v61")
        a("v_mov_b32 v7, 159")
        a(f"v_cmp_eq_u32 vcc, 0xa1, v{CO+2}")
        a("s_mul_i32 s54, s32, 320")
        a(f"v_cndmask_b32 v{CO+2}, v{CO+2}, v7, vcc")
        for c in range(3):
            a(f"v_cmp_{'ge' if c == 2 else 'gt'}_u32 vcc, v7, v{CO+c}")
            a(f"s_andn2_b64 s[{86+2*c}:{87+2*c}], vcc, s[58:59]")
            a(f"s_or_b64 s[{92+2*c}:{93+2*c}], s[58:59], s[{86+2*c}:{87+2*c}]")
            a(f"v_lshl_add_u32 v{CO+c}, v{CO+c}, 1, s54")
        a("v_lshrrev_b32 v12, 4, v0")
        a("v_lshlrev_b32 v12, 8, v12")
        a("v_lshl_add_u32 v12, v3, 2, v12")
        a("s_lshl_b32 s54, s31, 14")
        a(f"s_add_u32 s54, s54, {WS_AC2}")
        a("v_add_u32 v12, s54, v12")
        a("s_add_u32 s40, s24, 4096")
        a("s_addc_u32 s41, s25, 0")
        a("s_add_u32 s42, s24, 8192")
        a("s_addc_u32 s43, s25, 0")
        AB = ["s[24:25]", "s[40:41]", "s[42:43]"]
        a("s_mov_b32 s48, s20")
        a("s_mov_b32 s49, s21")
        a("s_mov_b32 s50, 2560")
        a("s_mov_b32 s51, 0x20000")
        a("s_mul_i32 s56, s31, 1280")
        a(f"s_mov_b32 s55, {f32hex(128)}")
        a("s_barrier")
        stamp(5)
        a(f"ds_read_b128 v[{AO}:{AO+3}], v15 offset:{L_OW}")
        a(f"ds_read_b128 v[{CW}:{CW+3}], v14")
        a("s_waitcnt lgkmcnt(1)")
        stamp(2, "t")
        for ks in range(32):
            for c in range(3):
                b = 64 + ks * 6 + 2 * c
                d = AC + 4 * c
                a(f"v_mfma_f32_4x4x4_16b_bf16 v[{d}:{d+3}], v[{AO+2*(ks>>4)}:{AO+2*(ks>>4)+1}], v[{b}:{b+1}], {'0' if ks == 0 else 'v[%d:%d]' % (d, d+3)} cbsz:4 abid:{ks & 15}")
        a("s_waitcnt lgkmcnt(0)")
        a("s_nop 1")
        stamp(3, "t")
        for c in range(3):
            d = AC + 4 * c
            a(f"v_mul_f32 v{Y+c}, v{CW}, v{d}")
            a(f"v_mul_f32 v{TB+c}, v{CW+2}, v{d+2}")
            a(f"v_fmac_f32 v{Y+c}, v{CW+1}, v{d+1}")
            a(f"v_fmac_f32 v{TB+c}, v{CW+3}, v{d+3}")
            a(f"v_add_f32 v{Y+c}, v{Y+c}, v{TB+c}")
            a(f"v_cndmask_b32_e64 v{Y+c}, v{Y+c}, 1.0, s[58:59]")
            a(f"s_mov_b64 exec, s[{92+2*c}:{93+2*c}]")
            a(f"global_atomic_add_f32 v{O1+c}, v12, v{Y+c}, {AB[c]} sc0")
            a("s_mov_b64 exec, -1")
        stamp(4, "t")
        OF = of.replace('_', ' ').replace('x', '')
        if fin:
            for c in range(3):
                a("s_waitcnt vmcnt(2)")
                a(f"v_add_f32 v{Y+c}, v{O1+c}, v{Y+c}")
                a("s_nop 1")
                a(f"v_mov_b32_dpp v{TB+c}, v{Y+c} row_newbcast:7 row_mask:0xf bank_mask:0x3")
                a(f"v_mov_b32_dpp v{TB+c}, v{Y+c} row_newbcast:15 row_mask:0xf bank_mask:0xc")
                a(f"v_cvt_pk_bf16_f32 v{Y+c}, v{Y+c}, v{Y+c}")
                a(f"v_cmp_eq_f32 vcc, s55, v{TB+c}")
                a(f"s_and_b64 exec, vcc, s[{86+2*c}:{87+2*c}]")
                a(f"buffer_store_short v{Y+c}, v{CO+c}, s[48:51], s56 offen {OF}")
                if c < 2: a("s_mov_b64 exec, -1")
        else:
            a("s_waitcnt vmcnt(0)")
            for c in range(3): a(f"v_add_f32 v{Y+c}, v{O1+c}, v{Y+c}")
            a("s_nop 0")
            for c in range(3):
                a(f"v_mov_b32_dpp v{TB+c}, v{Y+c} row_newbcast:7 row_mask:0xf bank_mask:0x3")
                a(f"v_mov_b32_dpp v{TB+c}, v{Y+c} row_newbcast:15 row_mask:0xf bank_mask:0xc")
            for c in range(3): a(f"v_cvt_pk_bf16_f32 v{Y+c}, v{Y+c}, v{Y+c}")
            for c in range(3):
                a(f"v_cmp_eq_f32 vcc, s55, v{TB+c}")
                a(f"s_and_b64 exec, vcc, s[{86+2*c}:{87+2*c}]")
                a(f"buffer_store_short v{Y+c}, v{CO+c}, s[48:51], s56 offen {OF}")
                if c < 2: a("s_mov_b64 exec, -1")
    cutt = len(L)
    CL = 8
    CO = 92
    a(f"s_mov_b32 s57, {NP}")
    a(f"v_mov_b32 v14, {L_CW}")
    a("s_lshl_b32 s54, s32, 7")
    a("v_lshlrev_b32 v15, 5, v4")
    a("v_add_u32 v15, s54, v15")
    a("v_lshlrev_b32 v13, 5, v3")
    a("v_lshl_add_u32 v13, v4, 4, v13")
    a(f"s_mul_i32 s54, s32, {YS}")
    a("v_add_u32 v13, s54, v13")
    a(f"s_add_u32 s54, s54, {L_YB + 2560}")
    a("v_mov_b32 v5, s54")
    a("v_mov_b32 v6, 0x3e800000")
    a("ds_write_b32 v5, v6")
    sh = {8: 3, 16: 4}[seg]
    a(f"v_and_b32 v5, {seg-1}, v0")
    a(f"v_lshrrev_b32 v6, {sh}, v0")
    a(f"v_mul_u32_u24 v6, {seg-1}, v6")
    a("v_add_u32 v6, v6, v5")
    a(f"v_cmp_eq_u32 s[58:59], {seg-1}, v5")
    a("v_mov_b32 v7, 640")
    cstep = (256 // seg) * (seg - 1)
    for c in range(3):
        if c: a(f"v_add_u32 v6, {cstep}, v6")
        a(f"v_cmp_gt_u32 vcc, v7, v6")
        a(f"s_andn2_b64 s[{86+2*c}:{87+2*c}], vcc, s[58:59]")
        a(f"v_cndmask_b32_e64 v{CL+c}, v7, v6, s[{86+2*c}:{87+2*c}]")
        a(f"v_add_u32 v5, {256*c}, v0")
        a("v_cmp_gt_u32 vcc, s57, v5")
        a(f"s_and_b64 vcc, vcc, s[58:59]")
        a(f"s_or_b64 s[{92+2*c}:{93+2*c}], vcc, s[{86+2*c}:{87+2*c}]")
        a(f"v_lshlrev_b32 v{CO+c}, 1, v{CL+c}")
        a(f"v_lshlrev_b32 v{CL+c}, 2, v{CL+c}")
    if sp2:
        a("v_lshrrev_b32 v12, 4, v0")
        a("v_lshlrev_b32 v12, 8, v12")
        a("v_lshl_add_u32 v12, v3, 2, v12")
        a(f"s_and_b32 s54, s27, {R-1}")
        a("s_lshl_b32 s54, s54, 6")
        a("s_mul_i32 s55, s31, 12288")
        a("s_add_u32 s54, s54, s55")
        a(f"s_add_u32 s54, s54, {WS_ACC}")
        a("v_add_u32 v11, s54, v12")
        a("s_lshl_b32 s54, s31, 14")
        a(f"s_add_u32 s54, s54, {WS_AC2}")
        a("v_add_u32 v12, s54, v12")
        a("s_add_u32 s40, s24, 4096")
        a("s_addc_u32 s41, s25, 0")
        a("s_add_u32 s42, s24, 8192")
        a("s_addc_u32 s43, s25, 0")
        AB = ["s[24:25]", "s[40:41]", "s[42:43]"]
    else:
        a("v_lshlrev_b32 v12, 2, v0")
        a(f"s_and_b32 s54, s27, {R-1}")
        a(f"s_lshl_b32 s55, s31, 2")
        a("s_add_u32 s54, s54, s55")
        a("s_mul_i32 s54, s54, 3072")
        a(f"s_add_u32 s54, s54, {WS_ACC}")
        a("v_add_u32 v11, s54, v12")
        a("s_lshl_b32 s54, s31, 12")
        a(f"s_add_u32 s54, s54, {WS_AC2}")
        a("v_add_u32 v12, s54, v12")
        AB = [f"s[24:25] offset:{1024*c}" for c in range(3)]
    a("s_mov_b32 s48, s20")
    a("s_mov_b32 s49, s21")
    a("s_mov_b32 s50, 2560")
    a("s_mov_b32 s51, 0x20000")
    a("s_mul_i32 s56, s31, 1280")
    a(f"s_mov_b32 s54, {f32hex(td if td else 128 // R)}")
    a(f"s_mov_b32 s55, {f32hex(128)}")
    SAV = [62, 64, 66, 68, 4, 6]
    if dry & 1:
        a("s_mov_b64 s[52:53], 0")
        a("s_cmp_lg_u32 s32, 1")
        a("s_cbranch_scc1 L_real")
        for i in range(6):
            a(f"s_mov_b64 s[{SAV[i]}:{SAV[i]+1}], s[{86+2*i}:{87+2*i}]")
            a(f"s_mov_b64 s[{86+2*i}:{87+2*i}], 0")
        a("s_mov_b64 s[52:53], -1")
        a("s_branch L_tail")
        lab("L_real")
    a("s_waitcnt vmcnt(0)")
    a("s_barrier")
    lab("L_tail")
    stamp(5)
    if td: a("ds_read_b32 v7, v14 offset:16")
    a(f"ds_read_b128 v[{T}:{T+3}], v14")
    OV = 16
    for w in range(4):
        a(f"ds_read_b128 v[{OV+8*w}:{OV+8*w+3}], v15 offset:{L_OW + 512*w}")
        a(f"ds_read_b128 v[{OV+8*w+4}:{OV+8*w+7}], v15 offset:{L_OW + 512*w + 16}")
    a("s_waitcnt lgkmcnt(6)")
    for e in range(8):
        a(f"v_mul_f32 v{T+4+e}, v{T}, v{OV+e}")
    for w in range(1, 4):
        a(f"s_waitcnt lgkmcnt({6-2*w})")
        for e in range(8):
            a(f"v_fmac_f32 v{T+4+e}, v{T+w}, v{OV+8*w+e}")
    for e in range(8):
        a(f"v_cvt_pk_bf16_f32 v{T+4+e}, v{T+4+e}, v{T+4+e}")
    stamp(2, "t")
    AS2 = 48
    def mkA2(rq):
        s = AS2 + 4 * (rq & 1)
        for d in range(4):
            a(f"v_and_b32 v{s+d}, v{T+4+rq}, v{56+d}")
    if cyc:
        a("s_memtime s[36:37]")
        a("s_waitcnt lgkmcnt(0)")
    mkA2(0)
    for rq in range(8):
        if cyc == 2 and rq == 4:
            a("s_memtime s[42:43]")
        if rq + 1 < 8: mkA2(rq + 1)
        if td and rq == 2: a("v_cmp_le_f32 s[98:99], s54, v7")
        if td and rq == 4: a("v_cndmask_b32_e64 v1, v11, v12, s[98:99]")
        s = AS2 + 4 * (rq & 1)
        for sg in range(5):
            r = W + 4 * (rq * 5 + sg)
            c = "0" if rq == 0 else f"v[{ACC+4*sg}:{ACC+4*sg+3}]"
            a(f"v_mfma_f32_16x16x32_bf16 v[{ACC+4*sg}:{ACC+4*sg+3}], v[{s}:{s+3}], v[{r}:{r+3}], {c}")
    if cyc:
        a("s_memtime s[38:39]")
    a("s_mov_b32 exec_hi, 0")
    a("s_nop 2")
    for sg in range(5):
        if sg == 4: a("s_nop 3")
        a(f"ds_write_b128 v13, v[{ACC+4*sg}:{ACC+4*sg+3}] offset:{L_YB + 512*sg}")
    a("s_mov_b64 exec, -1")
    if dry & 1: a("s_cmp_lg_u32 s52, 0")
    a("s_waitcnt lgkmcnt(0)")
    stamp(3, "t")
    if cyc:
        a("s_memtime s[40:41]")
        a("s_waitcnt lgkmcnt(0)")
        for d, x in ((72, 38), (74, 40), (76, 42)):
            a(f"s_sub_u32 s{d}, s{x}, s36")
            a(f"s_mul_i32 s{d}, s{d}, 100")
            a(f"s_add_u32 s{d}, s{d}, s70")
        a("s_sub_u32 s78, s40, s100")
        a("s_mul_i32 s78, s78, 100")
        a("s_add_u32 s78, s78, s70")
    if dry & 1: a("s_cbranch_scc1 L_nb3")
    a("s_barrier")
    lab("L_nb3")
    for c in range(3):
        for u in range(4):
            a(f"ds_read_b32 v{T+4*c+u}, v{CL+c} offset:{L_YB + YS*u}")
    Y = 16; O1 = 20; TB = 24; O2 = 28
    def bcast(dst, src):
        if seg == 16:
            a(f"v_mov_b32_dpp v{dst}, v{src} row_newbcast:15 row_mask:0xf bank_mask:0xf")
        else:
            a(f"v_mov_b32_dpp v{dst}, v{src} row_newbcast:7 row_mask:0xf bank_mask:0x3")
            a(f"v_mov_b32_dpp v{dst}, v{src} row_newbcast:15 row_mask:0xf bank_mask:0xc")
    for c in range(3):
        b = T + 4 * c
        a(f"s_waitcnt lgkmcnt({8-4*c})")
        a(f"v_add_f32 v{b}, v{b}, v{b+1}")
        a(f"v_add_f32 v{b+2}, v{b+2}, v{b+3}")
        a(f"v_add_f32 v{Y+c}, v{b}, v{b+2}")
        if c == 2 or dry & 1: a(f"s_mov_b64 exec, s[{92+2*c}:{93+2*c}]")
        if notail: a("s_branch L_h_stamp")
        a(f"global_atomic_add_f32 v{O1+c}, v{1 if td else 11 if R > 1 else 12}, v{Y+c}, {AB[c]} sc0")
    a("s_mov_b64 exec, -1")
    stamp(4, "t")
    endl = "L_h_stamp" if stamps else "L_end"
    if R > 1:
        if td:
            stamp(6)
            a("s_cmp_gt_u32 s98, s52" if dry & 1 else "s_cmp_lg_u32 s98, 0")
            a("s_cbranch_scc1 L_fin")
        a("s_waitcnt vmcnt(0)")
        stamp(6)
        for c in range(3): a(f"v_add_f32 v{Y+c}, v{O1+c}, v{Y+c}")
        a("s_nop 0")
        for c in range(3): bcast(TB + c, Y + c)
        for c in range(3):
            a(f"v_cmp_eq_f32 vcc, s54, v{TB+c}")
            a(f"s_and_b64 s[{92+2*c}:{93+2*c}], vcc, s[{92+2*c}:{93+2*c}]")
        a("s_or_b64 vcc, s[92:93], s[94:95]")
        a("s_or_b64 vcc, vcc, s[96:97]")
        if dry & 1: a("s_or_b64 vcc, vcc, s[52:53]")
        a(f"s_cbranch_scc0 {endl}")
        for c in range(3):
            a(f"s_mov_b64 exec, s[{92+2*c}:{93+2*c}]")
            a(f"global_atomic_add_f32 v{O1+c}, v12, v{Y+c}, {AB[c]} sc0")
        a("s_mov_b64 exec, -1")
    lab("L_fin")
    a("s_waitcnt vmcnt(0)")
    for c in range(3): a(f"v_add_f32 v{Y+c}, v{O1+c}, v{Y+c}")
    a("s_nop 0")
    for c in range(3): bcast(TB + c, Y + c)
    for c in range(3): a(f"v_cvt_pk_bf16_f32 v{Y+c}, v{Y+c}, v{Y+c}")
    for c in range(3):
        a(f"v_cmp_eq_f32 vcc, s55, v{TB+c}")
        a(f"s_and_b64 vcc, vcc, s[{92+2*c}:{93+2*c}]")
        a(f"s_and_b64 s[{86+2*c}:{87+2*c}], vcc, s[{86+2*c}:{87+2*c}]")
    for c in range(3):
        a(f"s_mov_b64 exec, s[{86+2*c}:{87+2*c}]")
        a(f"buffer_store_short v{Y+c}, v{CO+c}, s[48:51], s56 offen")
    if dry & 1:
        a("s_cmp_eq_u32 s52, 0")
        a("s_cbranch_scc1 L_done")
        a("s_mov_b64 exec, -1")
        for i in range(6):
            a(f"s_mov_b64 s[{86+2*i}:{87+2*i}], s[{SAV[i]}:{SAV[i]+1}]")
        a("s_mov_b64 s[52:53], 0")
        a("s_branch L_real")
        lab("L_done")
    if t4: del L[cutt:]
    if stamps:
        a("s_mov_b64 exec, -1")
        a("s_waitcnt vmcnt(0)")
        lab("L_h_stamp")
        stamp(7)
        stamp_out("s32", 8)
    a("s_endpgm")
    if ctl:
        lab("L_c")
        woloads(range(8), cwo)
        stamp(2)
        if csd: zpoll("c")
        a("s_mov_b64 exec, 1")
        a(f"v_mov_b32 v14, {L_CNT}")
        if csd == 0:
            lg = 6
            a("s_lshl_b32 s54, s28, 6")
            a("s_add_u32 s54, s54, 4")
            a(f"s_and_b32 s57, s29, {cd-1}")
            PH = sum(i & (cd - 1) for i in range(64))
            CB = "s[22:23]"
        else:
            lg = 5
            a("s_and_b32 s54, s27, 7")
            a("s_mul_i32 s54, s54, 3072")
            a(f"s_add_u32 s54, s54, {WS_ACC + 3008}")
            a("s_bfe_u32 s57, s2, 0x10006")
            a("s_lshl_b32 s57, s57, 3")
            a("s_or_b32 s57, s57, s26")
            a("s_lshl_b32 s57, s57, 1")
            a("s_or_b32 s57, s57, s31")
            a(f"s_mul_i32 s57, s57, {cd}")
            a("s_lshr_b32 s57, s57, 5")
            PH = sum(i * cd >> 5 for i in range(32))
            CB = "s[24:25]"
        NS = 1 << lg
        a("v_mov_b32 v12, s54")
        a(f"s_add_u32 s57, s57, {c0 - cd}")
        a("s_mov_b32 s61, 0")
        if stamps:
            a("s_mov_b32 s60, 0")
        lab("L_c_poll")
        a("ds_read_b32 v5, v14 offset:8")
        a(f"s_add_u32 s58, s57, {cd}")
        a("s_add_u32 s61, s61, 1")
        a("s_waitcnt lgkmcnt(0)")
        a("v_readfirstlane_b32 s54, v5")
        a("s_nop 3")
        a(f"s_cmp_ge_u32 s54, {cstop}")
        a("s_cbranch_scc1 L_c_done")
        a("s_cmp_lt_u32 s54, s58")
        a("s_cbranch_scc1 L_c_next")
        a("v_subrev_u32 v6, s57, v5")
        a(f"global_atomic_add v7, v12, v6, {CB} sc0")
        a("s_sub_u32 s59, s54, s57")
        a("s_mov_b32 s57, s54")
        a(f"s_lshl_b32 s54, s54, {lg}")
        a("s_sub_u32 s59, s59, s54")
        sh_ = csh - 6 + lg
        K0 = NS * (c0 - cd) + PH + NS * cd // 2 - (cb * NS >> 6) + (1 << (sh_ - 1))
        a(f"s_add_u32 s59, s59, {K0}")
        a("s_waitcnt vmcnt(0)")
        a("v_readfirstlane_b32 s54, v7")
        a("s_nop 3")
        a("s_add_u32 s59, s59, s54")
        if stamps:
            a("s_add_u32 s60, s60, s59")
        a(f"s_ashr_i32 s59, s59, {sh_}")
        a(f"s_add_i32 s59, s59, {cmid}")
        a(f"s_max_i32 s59, s59, {4*Emin}")
        a(f"s_min_i32 s59, s59, {4*Emax}")
        a("v_mov_b32 v6, s59")
        a("ds_write_b32 v14, v6 offset:12")
        lab("L_c_next")
        a(f"s_sleep {csl}")
        a(f"s_cmp_lt_u32 s61, {SPIN}")
        a("s_cbranch_scc1 L_c_poll")
        lab("L_c_done")
        if stamps:
            a(f"s_ashr_i32 s60, s60, {lg}")
            a("s_mul_i32 s76, s60, 100")
            a("s_add_u32 s76, s76, s70")
            a("s_mul_i32 s78, s59, 100")
            a("s_add_u32 s78, s78, s70")
        a("s_mov_b64 exec, -1")
        a("s_branch L_h_bar2")

    P = 16
    S = 32
    A0 = 40
    OA = 48
    Q = 52
    M = 56
    T2 = 60
    RING = 64
    NG = D // 4
    lab("L_stream")
    stream[0] = True
    if sprio: a(f"s_setprio {sprio}")
    a("s_sub_u32 s33, s32, 4")
    gb, ib, wb, sb = pm[0:2], pm[2:4], pm[4:6], pm[6:8]
    pb = [b for b in range(8, 21) if b not in pm]
    assert len(pb) == 5
    PMASK = sum(1 << b for b in pb)
    a("s_lshl_b32 s52, s30, 21")
    def scat(dst, src, bits):
        for k in range(2):
            a(f"s_bfe_u32 s53, {src}, {(1 << 16) | k}")
            a(f"s_lshl_b32 s53, s53, {bits[k]}")
            a(f"s_add_u32 {dst}, {dst}, s53")
    if pm == (8,9,10,11,12,13,19,20):
        a("s_lshl_b32 s53, s28, 19")
        a("s_add_u32 s52, s52, s53")
        a("s_lshl_b32 s53, s33, 12")
        a("v_lshlrev_b32 v8, 4, v2")
        a("s_add_u32 s52, s52, s53")
    else:
        scat("s52", "s28", sb)
        scat("s52", "s33", wb)
        a("v_lshlrev_b32 v8, 4, v3")
        a("v_and_b32 v9, 1, v4")
        a(f"v_lshl_add_u32 v8, v9, {gb[0]}, v8")
        a("v_lshrrev_b32 v9, 1, v4")
        a(f"v_lshl_add_u32 v8, v9, {gb[1]}, v8")
    IOFF = [((i & 1) << ib[0]) + ((i >> 1) << ib[1]) for i in range(4)]
    IREG = [8, 9, 10, 7]
    if max(IOFF) >= 4096:
        for i in range(1, 4):
            a(f"v_add_u32 v{IREG[i]}, 0x{IOFF[i]:x}, v8")
    if rot == 0: a("s_mov_b32 s53, 0")
    elif rot == 1:
        a("s_lshl_b32 s53, s27, 14")
    elif rot == 2:
        a("s_brev_b32 s53, s27")
        a("s_lshr_b32 s53, s53, 13")
    elif rot == 3:
        a("s_lshr_b32 s53, s27, 2")
        a("s_lshl_b32 s53, s53, 14")
    elif rot == 4:
        a("s_lshr_b32 s53, s27, 2")
        a("s_lshl_b32 s53, s53, 16")
    elif rot == 5:
        a("s_mul_i32 s53, s2, 0x9e3779b1")
        a("s_lshr_b32 s53, s53, 27")
        a("s_lshl_b32 s53, s53, 14")
    a("s_mov_b32 s62, 0xcccccccc")
    a("s_mov_b32 s63, 0xcccccccc")
    a("s_mov_b32 s64, 0xaaaaaaaa")
    a("s_mov_b32 s65, 0xaaaaaaaa")
    a(f"s_mov_b32 s66, {SCALE}")
    a(f"s_mov_b32 s67, {LOG2E}")
    a("s_waitcnt lgkmcnt(0)")
    stamp(1, "s")
    a("s_mov_b32 s36, s10")
    a("s_mov_b32 s37, s11")
    a("s_mov_b32 s38, 0x4000000")
    a("s_mov_b32 s39, 0x20000")
    if ab:
        a("s_load_dwordx4 s[40:43], s[0:1], 8")
        a("s_load_dwordx4 s[44:47], s[0:1], 48")
        a("s_waitcnt lgkmcnt(0)")
        TT = [40, 44, 42, 46] if ab == 1 else [40, 42, 44, 46]
        a(f"s_mov_b32 s36, s{TT[0]}")
        a(f"s_mov_b32 s37, s{TT[0]+1}")
    if cfg:
        a("s_lshl_b32 s54, s2, 2")
        a("s_add_u32 s54, s54, s33")
        a("s_lshl_b32 s54, s54, 9")
        a("s_add_u32 s54, s54, 0x200000")
        a("v_lshlrev_b32 v5, 2, v2")
        a("v_add_u32 v5, s54, v5")
        a("global_load_dword v6, v5, s[24:25]")
        a("global_load_dword v8, v5, s[24:25] offset:256")
        a("s_waitcnt vmcnt(0)")
        for i in range(1, 4):
            a(f"v_readlane_b32 s54, v6, {31+i}")
            a("s_nop 1")
            a(f"v_xor_b32 v{IREG[i]}, s54, v8")
        a("v_readlane_b32 s54, v6, 0")
        a("s_mov_b32 s53, 1")
        a("s_nop 4")
    def fine_put():
        if fine:
            a("s_waitcnt lgkmcnt(0)")
            a("v_writelane_b32 v12, s90, m0")
            a("s_add_u32 m0, m0, 1")
    if fine: a("s_mov_b32 m0, 0")
    nlab = [0]
    def tick():
        a("s_mov_b64 exec, 1")
        a("ds_add_rtn_u64 v[194:195], v196, v[192:193] offset:8")
        a("s_mov_b64 exec, -1")
    def refill(gslot, E, boost=False, cc=False):
        if cc:
            a("s_waitcnt lgkmcnt(0)")
            a("v_readfirstlane_b32 s58, v195")
        if boost:
            a("s_waitcnt lgkmcnt(0)")
            a("v_readfirstlane_b32 s58, v11")
        if not cfg: a("s_add_u32 s54, s52, s53")
        if boost or cc: a("s_nop 1")
        for i in range(4):
            r = RING + 16 * gslot + 4 * i
            if cc:
                nlab[0] += 1
                a(f"s_waitcnt vmcnt({Emax-1})")
                for Ec in range(Emax, Emin, -1):
                    a(f"s_cmp_ge_u32 s58, {4*Ec - [3,1,2,0][i]}")
                    a(f"s_cbranch_scc1 L_bo{nlab[0]}")
                    a(f"s_waitcnt vmcnt({Ec-2})")
                lab(f"L_bo{nlab[0]}")
            elif boost:
                nlab[0] += 1
                a(f"s_waitcnt vmcnt({Eh-1})")
                a(f"s_bitcmp1_b32 s58, {4*gslot+i}")
                a(f"s_cbranch_scc1 L_bo{nlab[0]}")
                a(f"s_waitcnt vmcnt({E-1})")
                lab(f"L_bo{nlab[0]}")
            elif kb is not None:
                if i % kb[1] == 0: a(f"s_waitcnt vmcnt({kb[0]})")
            elif E and E < D: a(f"s_waitcnt vmcnt({E-1})")
            if max(IOFF) >= 4096 or cfg: a(f"buffer_load_dwordx4 v[{r}:{r+3}], v{IREG[i]}, s[36:39], s54 offen{kvflag}")
            else: a(f"buffer_load_dwordx4 v[{r}:{r+3}], v8, s[36:39], s54 offen offset:{IOFF[i]}{kvflag}")
        if cfg:
            a("v_readlane_b32 s54, v6, s53")
            a("s_add_u32 s53, s53, 1")
            a("s_and_b32 s53, s53, 31")
            a("s_nop 3")
        elif PMASK == 0x7c000:
            a("s_add_u32 s53, s53, 0x4000")
            a("s_and_b32 s53, s53, 0x7ffff")
        else:
            a(f"s_or_b32 s53, s53, 0x{0xffffffff ^ PMASK:x}")
            a("s_add_u32 s53, s53, 1")
            a(f"s_and_b32 s53, s53, 0x{PMASK:x}")
    for g in range(NG):
        if g == pre:
            if bar0: a("s_barrier")
            stamp(2, "s")
        refill(g, Epro)
        if g == 1: stamp(3, "s")
    stamp(4, "s")
    a("v_lshlrev_b32 v13, 4, v3")
    if ctl:
        a("v_mov_b32 v192, 1")
        a("v_mov_b32 v193, 0")
        a(f"v_mov_b32 v196, {L_CNT}")
    if sprio: a("s_setprio 0")
    stamp(1)
    a("s_barrier")
    stamp(2)
    if dly:
        a("s_cmp_eq_u32 s31, 0")
        a("s_cbranch_scc1 L_nodly")
        for i in range(dly): a("s_sleep 127")
        lab("L_nodly")
    a(f"ds_read_b128 v[{Q}:{Q+3}], v13 offset:{L_QB}")
    a("s_waitcnt lgkmcnt(0)")
    nit = 32 // NG
    tiles = NG // 4
    a(f"s_mov_b32 s55, 0")
    lab("L_kloop")
    if ab:
        a(f"s_cmp_eq_u32 s55, 1")
        a(f"s_cselect_b32 s36, s{TT[1]}, s36")
        a(f"s_cselect_b32 s37, s{TT[1]+1}, s37")
        a(f"s_cmp_eq_u32 s55, 3")
        a(f"s_cselect_b32 s36, s{TT[2]}, s36")
        a(f"s_cselect_b32 s37, s{TT[2]+1}, s37")
    else:
        a(f"s_cmp_eq_u32 s55, {nit-1}")
        a("s_cselect_b32 s36, s12, s36")
        a("s_cselect_b32 s37, s13, s37")
    for tl in range(tiles):
        for gq in range(4):
            gs = tl * 4 + gq
            a(f"s_waitcnt vmcnt({D-4})")
            if fine: a("s_memrealtime s[90:91]")
            if ctl: tick()
            for d in range(4):
                for i in range(4):
                    r = RING + 16 * gs + 4 * i + d
                    p = P + gq * 4 + i
                    a(f"v_dot2_f32_bf16 v{p}, v{r}, v{Q+d}, {'0' if d == 0 else 'v%d' % p}")
            refill(gs, E, cc=bool(ctl))
            fine_put()
        for t in range(8):
            a(f"v_add_f32_dpp v{P+t}, v{P+t}, v{P+t} row_ror:8 row_mask:0xf bank_mask:0x3")
        for t in range(8):
            a(f"v_add_f32_dpp v{P+t}, v{P+t+8}, v{P+t+8} row_ror:8 row_mask:0xf bank_mask:0xc")
        for t in range(4):
            a(f"v_add_f32_dpp v{P+t}, v{P+t}, v{P+t} row_half_mirror row_mask:0xf bank_mask:0x5")
        a("s_nop 0")
        for t in range(4):
            a(f"v_add_f32_dpp v{P+t}, v{P+t+4}, v{P+t+4} row_half_mirror row_mask:0xf bank_mask:0xa")
        a("s_nop 1")
        for t in range(4):
            a(f"v_add_f32_dpp v{P+t}, v{P+t}, v{P+t} quad_perm:[2,3,0,1] row_mask:0xf bank_mask:0xf")
        a(f"v_cndmask_b32_e64 v{P}, v{P}, v{P+2}, s[62:63]")
        a(f"v_cndmask_b32_e64 v{P+1}, v{P+1}, v{P+3}, s[62:63]")
        a("s_nop 1")
        a(f"v_add_f32_dpp v{P}, v{P}, v{P} quad_perm:[1,0,3,2] row_mask:0xf bank_mask:0xf")
        a(f"v_add_f32_dpp v{P+1}, v{P+1}, v{P+1} quad_perm:[1,0,3,2] row_mask:0xf bank_mask:0xf")
        a(f"v_cndmask_b32_e64 v{P}, v{P}, v{P+1}, s[64:65]")
        a(f"v_cvt_pk_bf16_f32 v{P}, v{P}, v{P}")
        a(f"v_and_b32 v{P}, 0xffff0000, v{P}")
        a(f"v_mul_f32 v{P}, s66, v{P}")
        a(f"v_cvt_pk_bf16_f32 v{P}, v{P}, v{P}")
        for i in range(7):
            a(f"v_mov_b32 v{S+i}, v{S+i+1}")
        a(f"v_and_b32 v{S+7}, 0xffff0000, v{P}")
    a("s_add_u32 s55, s55, 1")
    a(f"s_cmp_lt_u32 s55, {nit}")
    a("s_cbranch_scc1 L_kloop")
    stamp(3)
    a(f"v_max3_f32 v{T2}, v{S}, v{S+1}, v{S+2}")
    a(f"v_max3_f32 v{T2+1}, v{S+3}, v{S+4}, v{S+5}")
    a(f"v_max3_f32 v{T2}, v{T2}, v{S+6}, v{S+7}")
    a(f"v_max_f32 v{T2}, v{T2}, v{T2+1}")
    for dctl in ("row_ror:8", "row_ror:4", "row_ror:2", "row_ror:1"):
        a("s_nop 1")
        a(f"v_max_f32_dpp v{T2}, v{T2}, v{T2} {dctl} row_mask:0xf bank_mask:0xf")
    a("s_nop 1")
    a(f"v_max_f32_dpp v{T2}, v{T2}, v{T2} row_bcast:15 row_mask:0xa bank_mask:0xf")
    a("s_nop 1")
    a(f"v_max_f32_dpp v{T2}, v{T2}, v{T2} row_bcast:31 row_mask:0xc bank_mask:0xf")
    a("s_nop 1")
    a(f"v_readlane_b32 s56, v{T2}, 63")
    a("s_nop 1")
    for i in range(8):
        a(f"v_subrev_f32 v{S+i}, s56, v{S+i}")
    for i in range(8):
        a(f"v_mul_f32 v{S+i}, s67, v{S+i}")
    for i in range(8):
        a(f"v_exp_f32 v{S+i}, v{S+i}")
    a("s_nop 0")
    a(f"v_add_f32 v{T2}, v{S}, v{S+1}")
    a(f"v_add_f32 v{T2+1}, v{S+2}, v{S+3}")
    a(f"v_add_f32 v{T2+2}, v{S+4}, v{S+5}")
    a(f"v_add_f32 v{T2+3}, v{S+6}, v{S+7}")
    a(f"v_add_f32 v{T2}, v{T2}, v{T2+1}")
    a(f"v_add_f32 v{T2+2}, v{T2+2}, v{T2+3}")
    a(f"v_add_f32 v{T2+1}, v{T2}, v{T2+2}")
    for dctl in ("row_ror:8", "row_ror:4", "row_ror:2", "row_ror:1"):
        a("s_nop 1")
        a(f"v_add_f32_dpp v{T2+1}, v{T2+1}, v{T2+1} {dctl} row_mask:0xf bank_mask:0xf")
    a("s_nop 1")
    a(f"v_add_f32_dpp v{T2+1}, v{T2+1}, v{T2+1} row_bcast:15 row_mask:0xa bank_mask:0xf")
    a("s_nop 1")
    a(f"v_add_f32_dpp v{T2+1}, v{T2+1}, v{T2+1} row_bcast:31 row_mask:0xc bank_mask:0xf")
    a(f"v_mov_b32 v{T2}, s56")
    for i in range(8):
        a(f"v_cvt_pk_bf16_f32 v{S+i}, v{S+i}, v{S+i}")
    a("s_lshl_b32 s57, s33, 3")
    a(f"s_add_u32 s57, s57, {L_ML}")
    a("v_mov_b32 v13, s57")
    a(f"v_mov_b32 v14, {L_CNT}")
    a("v_mov_b32 v15, 1")
    a("s_mov_b32 exec_lo, 0")
    a("s_mov_b32 exec_hi, 0x80000000")
    a(f"ds_write_b64 v13, v[{T2}:{T2+1}]")
    a("ds_add_u32 v14, v15")
    a("s_mov_b64 exec, -1")
    for i in range(4):
        a(f"v_mov_b32 v{OA+i}, 0")
    stamp(4)
    def mkAv(tl, t, aset):
        for d in range(4):
            a(f"v_and_b32_dpp v{A0+4*aset+d}, v{S+tl}, v{M+d} row_newbcast:{t} row_mask:0xf bank_mask:0xf")
    def vbody(last, Ev, gn=99):
        mkAv(0, 0, 0)
        n = 0
        tot = tiles * 16
        for tl in range(tiles):
            for gq in range(4):
                gs = tl * 4 + gq
                if not (last and gs >= NG - lw): a(f"s_waitcnt vmcnt({D-4-4*gs if last else D-4})")
                if fine: a("s_memrealtime s[90:91]")
                if not last and tg and gs == tg:
                    a(f"s_cmp_lg_u32 s55, {tr}")
                    a("s_cbranch_scc1 L_v_notrig")
                    trigger()
                    lab("L_v_notrig")
                if not last and wi is not None and gs == wg:
                    a(f"s_cmp_lg_u32 s55, {wi}")
                    a("s_cbranch_scc1 L_v_nowt")
                    a("v_mov_b32 v15, 0x100")
                    a("s_mov_b64 exec, 1")
                    a("ds_add_u32 v14, v15 offset:4")
                    a("s_mov_b64 exec, -1")
                    lab("L_v_nowt")
                if not last and BO: a("ds_read_b32 v11, v14 offset:8")
                if not last and ctl: tick()
                if not last and lc: a("ds_read_b32 v195, v14 offset:12")
                for i in range(4):
                    nn = n + 1
                    if nn < tot: mkAv(nn // 16, nn % 16, nn & 1)
                    elif not last:
                        for k in range(8 - tiles):
                            a(f"v_mov_b32 v{S+k}, v{S+k+tiles}")
                    else:
                        a("s_nop 1")
                    r = RING + 16 * gs + 4 * i
                    s = A0 + 4 * (n & 1)
                    if last and gs >= NG - lw: a(f"s_waitcnt vmcnt({D-1-4*gs-i})")
                    a(f"v_mfma_f32_16x16x32_bf16 v[{OA}:{OA+3}], v[{s}:{s+3}], v[{r}:{r+3}], v[{OA}:{OA+3}]")
                    n += 1
                if not last: refill(gs, Ev if gs >= NG - gn else EV, BO and (gn == 99 or gs < NG - gn), cc=bool(ctl or lc))
                fine_put()
    a("s_mov_b32 s55, 0")
    lab("L_vloop")
    if ab:
        a(f"s_cmp_eq_u32 s55, 1")
        a(f"s_cselect_b32 s36, s{TT[3]}, s36")
        a(f"s_cselect_b32 s37, s{TT[3]+1}, s37")
    tr = int(trig * nit // 4)
    def trigger():
        a("v_mov_b32 v15, 0x100")
        a("s_mov_b64 exec, 1")
        a("ds_add_u32 v14, v15")
        a("s_mov_b64 exec, -1")
    if tg: assert not nend
    elif tr < nit - 1 - nend:
        a(f"s_cmp_lg_u32 s55, {tr}")
        a("s_cbranch_scc1 L_v_notrig")
        trigger()
        lab("L_v_notrig")
    else:
        assert nend == 1 and tr == nit - 2
    vbody(False, EV)
    a("s_add_u32 s55, s55, 1")
    a(f"s_cmp_lt_u32 s55, {nit-1-nend}")
    a("s_cbranch_scc1 L_vloop")
    if nend:
        lab("L_vloop2")
        if tr == nit - 2: trigger()
        vbody(False, Eend, gend)
        if nend > 1:
            a("s_add_u32 s55, s55, 1")
            a(f"s_cmp_lt_u32 s55, {nit-1}")
            a("s_cbranch_scc1 L_vloop2")
    if t4:
        a("v_and_b32 v13, 7, v3")
        a("v_lshlrev_b32 v13, 7, v13")
        a("v_lshl_add_u32 v13, v4, 6, v13")
        a("v_and_b32 v12, 8, v3")
        a("s_lshl_b32 s54, s33, 4")
        a("v_add3_u32 v13, v13, v12, s54")
        vbody(True, 0)
        a("s_mov_b32 exec_hi, 0")
        a("s_nop 6")
        a(f"v_cvt_pk_bf16_f32 v{OA}, v{OA}, v{OA+1}")
        a(f"v_cvt_pk_bf16_f32 v{OA+1}, v{OA+2}, v{OA+3}")
        a(f"ds_write_b64 v13, v[{OA}:{OA+1}] offset:{L_OW}")
    else:
        a("v_lshlrev_b32 v13, 5, v3")
        a("v_lshl_add_u32 v13, v4, 4, v13")
        a("s_lshl_b32 s54, s33, 9")
        a("v_add_u32 v13, s54, v13")
        vbody(True, 0)
        a("s_mov_b32 exec_hi, 0")
        a("s_nop 7")
        a(f"ds_write_b128 v13, v[{OA}:{OA+3}] offset:{L_OW}")
    a("s_waitcnt lgkmcnt(0)")
    stamp(5)
    a("s_barrier")
    if fine:
        a("s_mov_b64 exec, -1")
        a("s_lshl_b32 s54, s2, 2")
        a("s_add_u32 s54, s54, s33")
        a("s_lshl_b32 s54, s54, 8")
        a(f"s_add_u32 s54, s54, {WS_STAMP + 65536}")
        a("v_lshlrev_b32 v13, 2, v2")
        a("v_add_u32 v13, s54, v13")
        a("global_store_dword v13, v12, s[24:25]")
    if stamps:
        a("s_mov_b64 exec, -1")
        stamp_out("s32", 6)
    if padto:
        a(f"s_cmp_lg_u32 s2, 0")
        a("s_cbranch_scc1 L_end")
        a(f"s_add_u32 s94, s86, {padto}")
        lab("L_pad")
        a("s_sleep 2")
        a("s_memrealtime s[92:93]")
        a("s_waitcnt lgkmcnt(0)")
        a("s_sub_u32 s95, s94, s92")
        a("s_cmp_gt_i32 s95, 0")
        a("s_cbranch_scc1 L_pad")
    lab("L_end")
    a("s_endpgm")
    a('.section .rodata,"a"')
    a(".p2align 6")
    a(f".amdhsa_kernel {NAME}_kernel")
    a("  .amdhsa_next_free_vgpr 256")
    a("  .amdhsa_next_free_sgpr 102")
    a("  .amdhsa_accum_offset 256")
    a("  .amdhsa_group_segment_fixed_size 0")
    a("  .amdhsa_kernarg_size 104")
    a("  .amdhsa_user_sgpr_count 2")
    a("  .amdhsa_user_sgpr_kernarg_segment_ptr 1")
    a("  .amdhsa_system_sgpr_workgroup_id_x 1")
    a("  .amdhsa_float_denorm_mode_32 3")
    a(".end_amdhsa_kernel")
    out = []
    for l in L:
        if l.startswith((";", ".", "L_")) or l.endswith(":") or l.startswith("  ."): out.append(l)
        else: out.append("    " + l)
    return "\n".join(out) + "\n"

if __name__ == "__main__":
    cfgs = eval(sys.argv[1]) if len(sys.argv) > 1 else [dict()]
    names = []
    for c in cfgs:
        fn = "k_v7_" + "_".join(f"{k}{v}".replace(" ", "").replace("(", "").replace(")", "").replace(",", "x") for k, v in c.items()) + ".s"
        open("work/" + fn, "w").write(gen(**c))
        names.append(fn)
    print(" ".join(names))
    print(", ".join('"work/%s"' % o for o in names))
```
